```python
import torch

def _softmax(x, axis=-1):
    return torch.softmax(x, dim=axis)
def _gelu(x):
    return torch.nn.functional.gelu(x, approximate="tanh")
def _silu(x):
    return torch.nn.functional.silu(x)
def _sigmoid(x):
    return torch.sigmoid(x)
def _layernorm(x, axis=-1, eps=1e-5):
    m = x.mean(dim=axis, keepdim=True)
    v = x.var(dim=axis, keepdim=True, unbiased=False)
    return (x - m) / torch.sqrt(v + eps)
def _scatter_add(tgt, idx, src, axis=0):
    return tgt.clone().index_add_(axis, idx, src)
def _segment_sum(src, seg, n):
    out = torch.zeros((n,) + src.shape[1:], dtype=src.dtype)
    return out.index_add_(0, seg, src)
def _pad(x, pw):
    flat = tuple(v for pair in reversed(pw) for v in pair)
    return torch.nn.functional.pad(x, flat)

kernel_name = 'recurrent_scan__compressed_kv_cla__glu_gated_swiglu__decode'

def setup_inputs():

    _w = (lambda a: (lambda t: t.to(torch.bfloat16) if t.is_floating_point() else t)(torch.as_tensor(a)))
    def _A_setup():
        B, H, Sq, Sk, D, M = 2, 32, 1, 8192, 128, 512
        Dc = 4 * D
        return {
            "x": _w((lambda *s: torch.randn(*s, dtype=torch.bfloat16) * 0.05)(B, Sq, M)),
            "c_kv": _w((lambda *s: torch.randn(*s, dtype=torch.bfloat16) * 1.6)(B, Sk, Dc)),
            "w_q": _w((lambda *s: torch.randn(*s, dtype=torch.bfloat16) * 1.6)(M, H, D) * (M ** -0.5)),
            "w_uk": _w((lambda *s: torch.randn(*s, dtype=torch.bfloat16) * 1.6)(Dc, H, D) * (Dc ** -0.5)),
            "w_uv": _w((lambda *s: torch.randn(*s, dtype=torch.bfloat16) * 1.6)(Dc, H, D) * (Dc ** -0.5)),
            "w_o": _w((lambda *s: torch.randn(*s, dtype=torch.bfloat16) * 1.6)(H, D, M) * ((H * D) ** -0.5)),
        }
    _A_in = _A_setup()

    def _B_setup():
        B, S, D, F = 2, 1, 512, 1376
        return {
            "x": _w((lambda *s: torch.randn(*s, dtype=torch.bfloat16) * 0.05)(B, S, D)),
            "w1": _w((lambda *s: torch.randn(*s, dtype=torch.bfloat16) * 0.2)(D, F) * (2.0 / D) ** 0.5),
            "w3": _w((lambda *s: torch.randn(*s, dtype=torch.bfloat16) * 0.2)(D, F) * (2.0 / D) ** 0.5),
            "w2": _w((lambda *s: torch.randn(*s, dtype=torch.bfloat16) * 0.2)(F, D) * (2.0 / F) ** 0.5),
        }
    _B_in = _B_setup()

    return {
        "A_x": _A_in["x"],
        "A_c_kv": _A_in["c_kv"],
        "A_w_q": _A_in["w_q"],
        "A_w_uk": _A_in["w_uk"],
        "A_w_uv": _A_in["w_uv"],
        "A_w_o": _A_in["w_o"],
        "B_x": _B_in["x"],
        "B_w1": _B_in["w1"],
        "B_w3": _B_in["w3"],
        "B_w2": _B_in["w2"],
    }

def reference(A_x, A_c_kv, A_w_q, A_w_uk, A_w_uv, A_w_o, B_x, B_w1, B_w3, B_w2):
    def _A_ref(x, c_kv, w_q, w_uk, w_uv, w_o):
        B, Sq, M = x.shape[0], x.shape[1], x.shape[2]
        Sk = c_kv.shape[1]
        H, D = w_q.shape[1], w_q.shape[2]
        q = torch.einsum("bqm,mhd->bhqd", x, w_q)
        k = torch.einsum("bkc,chd->bhkd", c_kv, w_uk)
        v = torch.einsum("bkc,chd->bhkd", c_kv, w_uv)
        scores = torch.einsum("bhqd,bhkd->bhqk", q, k) * (D ** -0.5)
        off = Sk - Sq
        qi = torch.arange(Sq)[:, None]
        kj = torch.arange(Sk)[None, :]
        cmask = kj <= (qi + off)
        scores = torch.where(cmask[None, None], scores, -1e9)
        p = _softmax(scores, axis=-1)
        ctx = torch.einsum("bhqk,bhkd->bhqd", p, v)
        return torch.einsum("bhqd,hdm->bqm", ctx, w_o)

    def _B_ref(x, w1, w3, w2):
        gate = torch.einsum("bsd,df->bsf", x, w1)
        up = torch.einsum("bsd,df->bsf", x, w3)
        h = _silu(gate) * up
        out = torch.einsum("bsf,fd->bsd", h, w2)
        return out

    x = A_x
    xn = _layernorm(x, axis=-1)
    s = _A_ref(xn, A_c_kv, A_w_q, A_w_uk, A_w_uv, A_w_o)
    g = _silu(_B_ref(xn, B_w1, B_w3, B_w2))
    return x + s * g
```

```python
NAME = "recurrent_scan__compressed_kv_cla__glu_gated_swiglu__decode"
HDR = """; @launch grid=({gx},1,1) block=({bx},1,1) lds={lds}
.amdgcn_target "amdgcn-amd-amdhsa--gfx950"
.text
.globl {name}_kernel
.p2align 8
.type {name}_kernel,@function
{name}_kernel:
"""
FTR = """
s_endpgm
.section .rodata,"a"
.p2align 6
.amdhsa_kernel {name}_kernel
  .amdhsa_next_free_vgpr {nfv}
  .amdhsa_next_free_sgpr {nfs}
  .amdhsa_accum_offset {acc}
  .amdhsa_group_segment_fixed_size 0
  .amdhsa_kernarg_size 104
  .amdhsa_user_sgpr_count 2
  .amdhsa_user_sgpr_kernarg_segment_ptr 1
  .amdhsa_system_sgpr_workgroup_id_x 1
{extra}.end_amdhsa_kernel
"""
SIZES = dict(x=2048, ckv=16777216, wq=4194304, wuk=4194304, wuv=4194304, wo=4194304, bx=2048,
             w1=1409024, w3=1409024, w2=1409024, out=2048, dbg=256, ws=268435456)
ORDER = ["x", "ckv", "wq", "wuk", "wuv", "wo", "bx", "w1", "w3", "w2", "out", "dbg", "ws"]
STAMP_OFF = 200 << 20

class A:
    def __init__(self):
        self.l = []
    def __call__(self, s=""):
        for line in s.split("\n"):
            self.l.append("    " + line.strip() if line.strip() and not line.strip().endswith(":") else line.strip())
    def text(self):
        return "\n".join(self.l) + "\n"

def wrap(body, gx=256, bx=256, lds=0, nfv=256, nfs=102, acc=256, extra=""):
    return HDR.format(gx=gx, bx=bx, lds=lds, name=NAME) + body + FTR.format(name=NAME, nfv=nfv, nfs=nfs, acc=acc, extra=extra)
```

```python
import re
REG = re.compile(r"^(-|\|)?(abs\()?([vsa])(\d+)\)?\|?$")
RNG = re.compile(r"^(-)?([vsa])\[(\d+):(\d+)\]$")
TRANS = ("v_exp_f32", "v_log_f32", "v_rcp_f32", "v_rsq_f32", "v_sqrt_f32", "v_sin_f32", "v_cos_f32", "v_rcp_iflag_f32")
def regs(op):
    op = op.strip()
    m = REG.match(op)
    if m: return [(m.group(3), int(m.group(4)))]
    m = RNG.match(op)
    if m: return [(m.group(2), i) for i in range(int(m.group(3)), int(m.group(4)) + 1)]
    if op == "vcc": return [("s", "vcc")]
    if op in ("vcc_lo", "vcc_hi"): return [("s", "vcc")]
    if op == "exec": return [("s", "exec")]
    if op == "m0": return [("s", "m0")]
    return []
class E:
    def __init__(self):
        self.lines = []
        self.pos = 0
        self.reset()
        self.ninst = 0
    def reset(self):
        self.vw = {}
        self.vtrans = {}
        self.mf = {}
        self.mfc = {}
        self.sw = {}
        self.m0 = -100
        self.stw = {}
        self.execw = -100
    def raw(self, s):
        self.lines.append(s)
    def nop(self, n):
        while n > 0:
            k = min(n, 16)
            self.lines.append(f"    s_nop {k-1}")
            self.pos += k; n -= k
    def label(self, name, pad=0):
        self.lines.append(f"{name}:")
    def __call__(self, text):
        for line in text.split("\n"):
            line = line.split(";")[0].strip()
            if not line: continue
            if line.endswith(":"):
                self.label(line[:-1]); continue
            self.inst(line)
    def inst(self, line):
        parts = line.split(None, 1)
        mn = parts[0]
        rest = parts[1] if len(parts) > 1 else ""
        ops = [o.strip() for o in rest.split(",")] if rest else []
        mods = ""
        if ops:
            last = ops[-1].split(None, 1)
            ops[-1] = last[0]
            mods = last[1] if len(last) > 1 else ""
        need = 0
        def req(prev, n):
            nonlocal need
            if prev is None: return
            d = self.pos - prev - 1
            if d < n: need = max(need, n - d)
        isv = mn.startswith("v_")
        ismf = mn.startswith("v_mfma")
        isvm = mn.startswith("buffer_") or mn.startswith("global_")
        isds = mn.startswith("ds_")
        w = []; r = []
        if ismf:
            passes = 8 if "32x32" in mn else 4
            D, A_, B_, C_ = [regs(o) for o in ops[:4]]
            for x in A_ + B_ + C_:
                req(self.vw.get(x), 2)
            for x in A_ + B_:
                if x in self.mf: req(self.mf[x][0], {4: 8, 8: 12}[self.mf[x][1]])
            for x in C_:
                if x in self.mf and not (C_ == D and self.mf[x][2] == tuple(D)):
                    req(self.mf[x][0], {4: 6, 8: 10}[self.mf[x][1]])
            for x in D:
                if x in self.mf and self.mf[x][2] != tuple(D): req(self.mf[x][0], {4: 6, 8: 10}[self.mf[x][1]])
            req(self.execw, 4)
        elif isv:
            dpp = ("_dpp" in mn) or ("row_" in mods) or ("quad_perm" in mods)
            swap = mn.startswith("v_permlane")
            nd = 1
            if mn.startswith(("v_add_co", "v_sub_co", "v_addc_co", "v_subb_co", "v_div_scale", "v_mad_u64")): nd = 2
            for o in ops[:nd]: w += regs(o)
            for o in ops[nd:]: r += regs(o)
            if swap: w += regs(ops[1]); r += regs(ops[0])
            if mn.startswith(("v_fmac", "v_dot2c", "v_mac", "v_writelane")) or (dpp and "bound_ctrl" not in mods and False): r += regs(ops[0])
            if mn.startswith("v_cndmask") and len(ops) == 3: r += [("s", "vcc")]
            for x in r:
                if x[0] == "v" or x[0] == "a":
                    if dpp and x in regs(ops[nd]): req(self.vw.get(x), 2)
                    if swap: req(self.vw.get(x), 2)
                    if mn.startswith(("v_readlane", "v_readfirstlane")): req(self.vw.get(x), 1)
                    if not mn.startswith(TRANS): req(self.vtrans.get(x), 1)
                    if x in self.mf: req(self.mf[x][0], {4: 8, 8: 12}[self.mf[x][1]])
                else:
                    req(self.sw.get(x), 4 if mn.startswith(("v_readlane", "v_writelane")) else 2)
            if dpp: req(self.execw, 5)
            if swap or mn.startswith(("v_readlane", "v_readfirstlane", "v_writelane")): req(self.execw, 4)
            for x in w:
                if x[0] in "va":
                    if x in self.mf: req(self.mf[x][0], {4: 8, 8: 12}[self.mf[x][1]])
                    if x in self.mfc: req(self.mfc[x][0], {4: 3, 8: 7}[self.mfc[x][1]])
                    req(self.stw.get(x), 2)
        elif isvm or isds:
            allr = []
            for o in ops: allr += regs(o)
            for x in allr:
                if x[0] in "va":
                    if x in self.mf: req(self.mf[x][0], {4: 8, 8: 12}[self.mf[x][1]])
                    req(self.vtrans.get(x), 1)
                else:
                    if isvm: req(self.sw.get(x), 5)
            if isvm and ("lds" in mods.split() or "_lds_" in mn): req(self.m0, 1)
            if isvm and "load" in mn or (isds and "read" in mn):
                for x in regs(ops[0]): req(self.stw.get(x), 1)
        if need: self.nop(need)
        if ismf:
            for x in D: self.mf[x] = (self.pos, passes, tuple(D)); self.vw.pop(x, None)
            for x in C_: self.mfc[x] = (self.pos, passes)
        elif isv:
            for x in w:
                if x[0] in "va":
                    self.vw[x] = self.pos; self.mf.pop(x, None)
                    if mn.startswith(TRANS): self.vtrans[x] = self.pos
                    else: self.vtrans.pop(x, None)
                else:
                    self.sw[x] = self.pos
                    if x == ("s", "exec"): self.execw = self.pos
            if mn.startswith("v_cmpx"): self.execw = self.pos
        elif isvm and "store" in mn and (mn.endswith("x4") or mn.endswith("x3")):
            for x in regs(ops[0]): self.stw[x] = self.pos
        elif mn.startswith("s_") and ops and ops[0] == "m0":
            self.m0 = self.pos
        self.lines.append("    " + line)
        self.ninst += 1
        if mn == "s_nop": self.pos += int(ops[0], 0) + 1
        else: self.pos += 1
    def text(self):
        return "\n".join(self.lines) + "\n"
```

```python
import sys
from emit import E
from asmlib import NAME, SIZES, STAMP_OFF

H1O  = 0x010000
H2O  = 0x050000
H2C  = 0x060000
H4O  = 0x080000
H5O  = 0x100000
HGO  = 0x120000
HFO  = 0x150000
H3S  = 0x180000
H3O  = 0x200000
QL  = 131072
SCR = 147456
QC  = SCR
PM  = SCR + 512
PL  = SCR + 768
PP  = SCR + 1024
CL  = SCR + 5120
FR  = SCR + 7168
LDS_BYTES = 163840

SRD = dict(x=8, ckv=12, wq=16, wuk=20, wuv=24, wo=28, w1=32, w3=36, w2=40, ws=44, out=48)
KOFF = dict(x=0, ckv=8, wq=16, wuk=24, wuv=32, wo=40, w1=56, w3=64, w2=72, out=80, ws=96)
def srd(n): return f"s[{SRD[n]}:{SRD[n]+3}]"
SCALE = (128 ** -0.5) * 1.4426950408889634
import struct
def f2u(f): return struct.unpack("<I", struct.pack("<f", f))[0]

class G:
    def __init__(self, front="SYM", stamps=False, W=10, qpos=32, pol_w="nt", pol_k="nt", pol_k2=None, uvpos="pre", wopos="post",
                 ps=2, maxpoll=4000, ack1=True, ack3=True, ack4=True, rdelay=0):
        self.__dict__.update(locals())
        self.a = E()
        if pol_k2 is None: self.pol_k2 = pol_k
    def stamp(self, k):
        if self.stamps:
            self.a(f"s_memrealtime s[60:61]\ns_waitcnt lgkmcnt(0)\ns_mov_b32 s{88+k}, s60")
    def allreduce(self, vs, op, tmp, rows=True, x16=True, x32=True):
        a = self.a
        if rows:
            for r in (8, 4, 2, 1):
                for v in vs: a(f"{op}_dpp v{v}, v{v}, v{v} row_ror:{r} row_mask:0xf bank_mask:0xf")
        for en, ins in ((x16, "v_permlane16_swap_b32"), (x32, "v_permlane32_swap_b32")):
            if not en: continue
            for v, t in zip(vs, tmp): a(f"v_mov_b32 v{t}, v{v}")
            for v, t in zip(vs, tmp): a(f"{ins} v{t}, v{v}")
            for v, t in zip(vs, tmp): a(f"{op} v{v}, v{t}, v{v}")
    def rbf(self, v, cnt=1):
        self.a(f"v_cvt_pk_bf16_f32 v{v}, v{v}, v{v}\nv_and_b32 v{v}, 0xffff0000, v{v}")
    def poll_head(self, name):
        self.a(f"s_mov_b32 s59, 0\nL_{name}:")
    def poll_tail(self, name, bad, mask=True):
        a = self.a
        a(f"v_cmp_ne_u32 vcc, 0, v{bad}\ns_cmp_eq_u64 vcc, 0\ns_cbranch_scc1 L_{name}_ok")
        if self.ps: a(f"s_sleep {self.ps}")
        a(f"s_add_u32 s59, s59, 1\ns_cmp_lt_u32 s59, {self.maxpoll}\ns_cbranch_scc1 L_{name}\nL_{name}_ok:")
    def ln_ops(self, sP):
        a = self.a
        a(f"""v_bfe_u32 v10, v1, 3, 1
        v_lshlrev_b32 v10, 10, v10
        v_lshl_add_u32 v10, v3, 5, v10
        buffer_load_dwordx4 v[16:19], v4, {srd('x')}, 0 offen
        buffer_load_dwordx4 v[20:23], v4, {srd('x')}, 0 offen offset:1024
        buffer_load_dwordx4 v[24:27], v10, {srd('x')}, {sP} offen
        buffer_load_dwordx4 v[28:31], v10, {srd('x')}, {sP} offen offset:16""")
    def ln_compute(self):
        a = self.a
        for r in range(2):
            for j in range(4):
                a(f"v_lshlrev_b32 v{32+8*r+2*j}, 16, v{16+4*r+j}\nv_and_b32 v{33+8*r+2*j}, 0xffff0000, v{16+4*r+j}")
        for r in range(2):
            b = 32 + 8 * r
            a(f"v_add_f32 v{48+r}, v{b}, v{b+1}\nv_add_f32 v{50+r}, v{b+2}, v{b+3}\nv_add_f32 v{52+r}, v{b+4}, v{b+5}\nv_add_f32 v{54+r}, v{b+6}, v{b+7}")
        for r in range(2):
            a(f"v_add_f32 v{48+r}, v{48+r}, v{50+r}\nv_add_f32 v{52+r}, v{52+r}, v{54+r}")
        for r in range(2):
            a(f"v_add_f32 v{48+r}, v{48+r}, v{52+r}")
        self.allreduce([48, 49], "v_add_f32", [50, 51])
        a("v_mul_f32 v48, 0x3b000000, v48\nv_mul_f32 v49, 0x3b000000, v49")
        for j in range(8):
            for r in range(2):
                a(f"v_sub_f32 v{32+8*r+j}, v{32+8*r+j}, v{48+r}")
        for r in range(2):
            a(f"v_mul_f32 v{52+r}, v{32+8*r}, v{32+8*r}\nv_mul_f32 v{54+r}, v{33+8*r}, v{33+8*r}")
        for j in range(2, 8, 2):
            for r in range(2):
                a(f"v_fmac_f32 v{52+r}, v{32+8*r+j}, v{32+8*r+j}\nv_fmac_f32 v{54+r}, v{33+8*r+j}, v{33+8*r+j}")
        for r in range(2):
            a(f"v_add_f32 v{52+r}, v{52+r}, v{54+r}")
        self.allreduce([52, 53], "v_add_f32", [50, 51])
        a("v_and_b32 v50, 8, v1\nv_cmp_ne_u32 vcc, 0, v50")
        a("v_cndmask_b32 v48, v48, v49, vcc\nv_cndmask_b32 v52, v52, v53, vcc")
        a("v_mul_f32 v52, 0x3b000000, v52")
        self.rbf(48); self.rbf(52)
        a(f"v_add_f32 v52, {hex(f2u(1e-5))}, v52")
        self.rbf(52)
        a("v_sqrt_f32 v52, v52")
        self.rbf(52)
        a("v_rcp_f32 v52, v52")
        a("v_mul_f32 v48, v48, v52")
        for j in range(8):
            a(f"v_lshlrev_b32 v{32+2*j}, 16, v{24+j}\nv_and_b32 v{33+2*j}, 0xffff0000, v{24+j}")
        for i in range(16):
            a(f"v_fma_f32 v{32+i}, v{32+i}, v52, -v48")
        for i in range(16):
            a(f"v_cvt_pk_bf16_f32 v{32+i}, v{32+i}, v{32+i}")
        for i in range(16):
            for j in range(4):
                a(f"v_and_b32 v{128+4*i+j}, v{32+i}, v{6+j}")
    def gemv16(self, nwait_after=0):
        a = self.a
        for i in range(16):
            if i % 4 == 0: a(f"s_waitcnt vmcnt({12-i+nwait_after})")
            c = "0" if i == 0 else "v[12:15]"
            a(f"v_mfma_f32_16x16x32_bf16 v[12:15], v[{128+4*i}:{131+4*i}], v[{64+4*i}:{67+4*i}], {c}")
    def granule_std(self):
        self.a("v_cvt_pk_bf16_f32 v12, v12, v13\nv_cvt_pk_bf16_f32 v13, v14, v15\nv_mov_b32 v14, s4\nv_mov_b32 v15, 0")
    def get_tag(self):
        self.a("s_waitcnt lgkmcnt(0)\ns_add_u32 s7, s4, 1\ns_lshl_b32 s4, s7, 2\ns_and_b32 s4, s4, 0x3fff0000\ns_and_b32 s58, s7, 0x3fff\ns_or_b32 s4, s4, s58")
    def gen(self):
        a = self.a
        pw = " " + self.pol_w if self.pol_w else ""
        WS = srd("ws")
        a("s_cmp_ge_u32 s2, 256\ns_cbranch_scc1 L_end")
        if self.stamps: a("s_memrealtime s[60:61]")
        for n in ["ws", "x", "wq", "wuk", "ckv", "wuv", "wo", "w1", "w3", "w2", "out"]:
            a(f"s_load_dwordx2 s[{SRD[n]}:{SRD[n]+1}], s[0:1], {KOFF[n]}")
        a("v_lshrrev_b32 v10, 6, v0\nv_and_b32 v1, 63, v0\nv_and_b32 v2, 15, v0\nv_readfirstlane_b32 s3, v10")
        a("v_lshrrev_b32 v3, 4, v1\nv_lshlrev_b32 v4, 4, v1\nv_lshlrev_b32 v5, 4, v2\nv_lshl_add_u32 v5, v3, 13, v5")
        for n in SRD:
            a(f"s_mov_b32 s{SRD[n]+2}, {SIZES[n]}\ns_mov_b32 s{SRD[n]+3}, 0x20000")
        a("s_and_b32 s52, s2, 7\ns_lshr_b32 s53, s2, 3\ns_lshr_b32 s58, s53, 1\ns_lshl_b32 s56, s52, 4\ns_add_u32 s56, s56, s58\ns_and_b32 s57, s53, 1")
        if self.front == "SYM":
            a("s_lshr_b32 s54, s53, 3\ns_and_b32 s55, s53, 7")
        else:
            a("s_lshr_b32 s54, s53, 3\ns_and_b32 s55, s58, 3\ns_lshl_b32 s55, s55, 1\ns_and_b32 s58, s3, 1\ns_add_u32 s55, s55, s58")
        a("s_lshl_b32 s58, s52, 2\ns_add_u32 s54, s54, s58")
        a("v_and_b32 v10, 1, v1\nv_cmp_eq_u32 vcc, 1, v10\nv_mov_b32 v11, 0xffff\nv_mov_b32 v12, 0xffff0000\nv_cndmask_b32 v11, v11, v12, vcc\nv_bfe_u32 v10, v1, 1, 2")
        for j in range(4):
            a(f"v_cmp_eq_u32 vcc, {j}, v10\nv_cndmask_b32 v{6+j}, 0, v11, vcc")
        a("s_waitcnt lgkmcnt(0)")
        a(f"s_load_dword s4, s[{SRD['ws']}:{SRD['ws']+1}], 0")
        if self.stamps:
            a("s_mov_b32 s88, s60")
            for k in range(1, 14): a(f"s_mov_b32 s{88+k}, s60")
        nA = 1 if self.front == "SYM" else 2
        if self.front == "FS":
            a("s_cmp_eq_u32 s57, 1\ns_cbranch_scc1 L_nofront")
        a(f"s_cmp_ge_u32 s3, {2*nA}\ns_cbranch_scc1 L_fidle\ns_cmp_ge_u32 s3, {nA}\ns_cbranch_scc1 L_B")
        a("s_lshl_b32 s58, s55, 7")
        self.ln_ops("s58")
        a("v_lshlrev_b32 v11, 4, v2\nv_lshl_add_u32 v11, v3, 17, v11")
        a("s_lshl_b32 s5, s55, 19\ns_lshl_b32 s58, s54, 8\ns_add_u32 s5, s5, s58")
        for i in range(16):
            a(f"buffer_load_dwordx4 v[{64+4*i}:{67+4*i}], v11, {srd('wq')}, s5 offen{pw}\ns_add_u32 s5, s5, 8192")
        a("s_barrier")
        a("s_waitcnt vmcnt(16)")
        self.ln_compute()
        self.get_tag()
        self.gemv16()
        self.stamp(1)
        a("v_and_b32 v10, 16, v1\nv_cmp_ne_u32 vcc, 0, v10\nv_mov_b32 v10, s4\nv_mov_b32 v11, 0")
        a("v_cvt_pk_bf16_f32 v16, v12, v13\nv_cvt_pk_bf16_f32 v17, v14, v15")
        a("v_cndmask_b32 v12, v11, v16, vcc\nv_cndmask_b32 v13, v10, v17, vcc\nv_cndmask_b32 v14, v16, v10, vcc\nv_cndmask_b32 v15, v17, v11, vcc")
        a(f"s_lshl_b32 s5, s54, 3\ns_add_u32 s5, s5, s55\ns_lshl_b32 s5, s5, 10\ns_add_u32 s5, s5, {H1O}")
        a(f"buffer_store_dwordx4 v[12:15], v4, {WS}, s5 offen sc1")
        if self.ack1: a("s_waitcnt vmcnt(0)")
        a("s_barrier\ns_barrier\ns_branch L_tile")
        a("L_B:\ns_barrier")
        wu = SCR if self.front == "SYM" else 0
        if self.front == "SYM": a(f"s_mov_b32 s6, {wu}")
        else: a("s_and_b32 s6, s3, 1\ns_lshl_b32 s6, s6, 14")
        a("v_lshrrev_b32 v10, 1, v3\nv_lshlrev_b32 v10, 4, v10\nv_xor_b32 v10, v5, v10")
        a("s_lshl_b32 s5, s55, 19\ns_lshl_b32 s58, s54, 8\ns_add_u32 s5, s5, s58\ns_mov_b32 m0, s6")
        for i in range(16):
            a(f"v_xor_b32 v11, {((2*i)&15)<<4}, v10\nbuffer_load_dwordx4 v11, {srd('wuk')}, s5 offen{pw} lds\ns_add_u32 s5, s5, 32768\ns_add_u32 m0, m0, 1024")
        a("v_xor_b32 v16, v2, v3\nv_lshlrev_b32 v16, 4, v16\nv_lshl_add_u32 v16, v2, 9, v16\nv_add_u32 v16, s6, v16")
        for s in range(1, 4): a(f"v_xor_b32 v{16+s}, {s<<6}, v16")
        a("v_and_b32 v20, 7, v1\nv_lshlrev_b32 v20, 10, v20\nv_bfe_u32 v21, v1, 3, 1\nv_lshl_add_u32 v20, v21, 9, v20\nv_lshl_add_u32 v20, v3, 4, v20")
        self.get_tag()
        a(f"s_lshl_b32 s5, s54, 13\ns_add_u32 s5, s5, {H1O}")
        a("s_waitcnt vmcnt(0)")
        self.stamp(2)
        for t in range(4):
            for s in range(4):
                r = 64 + 16 * t + 4 * s
                a(f"ds_read_b128 v[{r}:{r+3}], v{16+s} offset:{(t&1)*8192+(t>>1)*256}")
        a("s_barrier")
        self.poll_head("h1")
        for s in range(4):
            r = 128 + 8 * s
            a(f"buffer_load_dwordx4 v[{r}:{r+3}], v20, {WS}, s5 offen offset:{64*s} sc1")
            a(f"buffer_load_dwordx4 v[{r+4}:{r+7}], v20, {WS}, s5 offen offset:{64*s+256} sc1")
        a("s_waitcnt vmcnt(0)")
        a("v_xor_b32 v10, s4, v129\nv_xor_b32 v11, s4, v134")
        for s in range(1, 4):
            a(f"v_xor_b32 v12, s4, v{129+8*s}\nv_xor_b32 v13, s4, v{134+8*s}\nv_or3_b32 v10, v10, v12, v13")
        a("v_or_b32 v10, v10, v11")
        self.poll_tail("h1", 10)
        self.stamp(3)
        a("s_waitcnt lgkmcnt(0)")
        for s in range(4):
            for t in range(4):
                c = "0" if s == 0 else f"v[{32+4*t}:{35+4*t}]"
                a(f"v_mfma_f32_16x16x32_bf16 v[{32+4*t}:{35+4*t}], v[{130+8*s}:{133+8*s}], v[{64+16*t+4*s}:{67+16*t+4*s}], {c}")
        for t in range(4):
            a(f"v_add_f32 v{32+4*t}, v{32+4*t}, v{33+4*t}\nv_add_f32 v{34+4*t}, v{34+4*t}, v{35+4*t}")
        for t in range(4):
            a(f"v_add_f32 v{32+4*t}, v{32+4*t}, v{34+4*t}")
        a("v_permlane16_swap_b32 v32, v36\nv_permlane16_swap_b32 v40, v44")
        a("v_add_f32 v32, v32, v36\nv_add_f32 v40, v40, v44")
        a(f"v_mul_f32 v32, {hex(f2u(SCALE))}, v32\nv_mul_f32 v40, {hex(f2u(SCALE))}, v40")
        a("v_cvt_pk_bf16_f32 v32, v32, v40")
        a("v_and_b32 v10, 31, v1\nv_lshlrev_b32 v10, 2, v10\nv_lshrrev_b32 v11, 5, v1\nv_lshl_add_u32 v10, v11, 15, v10")
        a(f"s_lshl_b32 s5, s54, 3\ns_add_u32 s5, s5, s55\ns_lshl_b32 s6, s5, 8\ns_add_u32 s6, s6, {H2C}\ns_lshl_b32 s5, s5, 7\ns_add_u32 s5, s5, {H2O}")
        a(f"buffer_store_dword v32, v10, {WS}, s5 offen sc1")
        a("v_mov_b32 v33, v32")
        self.allreduce([33], "v_add_u32", [34], x32=False)
        a("v_add_u32 v33, s4, v33\nv_lshlrev_b32 v10, 2, v1")
        a(f"buffer_store_dword v33, v10, {WS}, s6 offen sc1")
        a("s_barrier\ns_branch L_tile")
        a("L_fidle:\ns_barrier")
        self.get_tag()
        a("s_barrier\ns_barrier\ns_branch L_tile")
        if self.front == "FS":
            a("L_nofront:")
            self.get_tag()
        a("L_tile:")
        a("s_lshl_b32 s58, s3, 5\nv_xor_b32 v16, s58, v4\nv_xor_b32 v17, 128, v16\nv_xor_b32 v18, 16, v16\nv_xor_b32 v19, 144, v16")
        a("s_lshl_b32 s5, s56, 17\ns_lshl_b32 s6, s3, 10\ns_add_u32 s5, s5, s6")
        a(f"s_lshr_b32 s58, s56, 6\ns_lshl_b32 s62, s58, 15\ns_lshl_b32 s63, s57, 14\ns_add_u32 s62, s62, s63\ns_add_u32 s62, s62, s6\ns_add_u32 s62, s62, {H2O}")
        a(f"s_lshl_b32 s63, s57, 15\ns_lshl_b32 s58, s58, 7\ns_add_u32 s63, s63, s58\ns_and_b32 s58, s3, 1\ns_lshl_b32 s58, s58, 8\ns_add_u32 s63, s63, s58\ns_add_u32 s63, s63, {H2C}")
        a("v_lshlrev_b32 v20, 11, v2\nv_lshl_add_u32 v20, v3, 9, v20")
        def qgather():
            for j in range(4):
                a(f"s_add_u32 m0, s6, {QL+4096*j}\ns_add_u32 s58, s62, {4096*j}")
                a(f"buffer_load_dwordx4 v{16+j}, {WS}, s58 offen sc1 lds")
            a(f"s_and_b32 s58, s3, 1\ns_lshl_b32 s58, s58, 8\ns_add_u32 m0, s58, {QC}\ns_nop 0")
            a(f"buffer_load_dword v20, {WS}, s63 offen sc1 lds")
        def stream(pol, tagl):
            p = " " + pol if pol else ""
            for i in range(32):
                if i == self.qpos: qgather()
                if i >= self.W: a(f"s_waitcnt vmcnt({self.W-1})")
                a(f"s_add_u32 m0, s6, {4096*i}\ns_add_u32 s58, s5, {4096*i}")
                a(f"buffer_load_dwordx4 v{16+(i&3)}, {srd('ckv')}, s58 offen{p} lds")
            if self.qpos >= 32:
                a(f"s_waitcnt vmcnt({min(self.W-1, 4)})")
                qgather()
        if self.pol_k2 != self.pol_k:
            a("s_cmp_eq_u32 s57, 1\ns_cbranch_scc1 L_strS")
            stream(self.pol_k2, "F")
            a("s_branch L_strD\nL_strS:")
            stream(self.pol_k, "S")
            a("L_strD:")
        else:
            stream(self.pol_k, "")
        a("s_lshr_b32 s54, s53, 3\ns_lshl_b32 s58, s52, 2\ns_add_u32 s54, s54, s58\ns_bfe_u32 s55, s53, 0x20001")
        def tw(m):
            if m == "wuv":
                a("s_lshl_b32 s5, s55, 20\ns_lshl_b32 s58, s3, 15\ns_add_u32 s5, s5, s58\ns_lshl_b32 s58, s54, 8\ns_add_u32 s5, s5, s58")
                for i in range(8):
                    a(f"buffer_load_dwordx4 v[{192+4*i}:{195+4*i}], v5, {srd('wuv')}, s5 offen{pw}\ns_add_u32 s5, s5, {16*8192}")
            else:
                a("s_lshl_b32 s5, s54, 17\ns_lshl_b32 s58, s3, 15\ns_add_u32 s5, s5, s58\ns_lshl_b32 s58, s55, 8\ns_add_u32 s5, s5, s58")
                for i in range(8):
                    a(f"buffer_load_dwordx4 v[{224+4*i}:{227+4*i}], v5, {srd('wo')}, s5 offen offset:{1024*(i&3)}{pw}")
                    if i == 3: a("s_add_u32 s5, s5, 4096")
        npre = 8 * ((self.uvpos == "pre") + (self.wopos == "pre"))
        a("v_and_b32 v10, 7, v2\nv_lshlrev_b32 v10, 1, v10\nv_lshrrev_b32 v11, 3, v2\nv_or_b32 v10, v10, v11\nv_lshlrev_b32 v10, 4, v10")
        a("v_lshl_add_u32 v10, v3, 8, v10\nv_lshl_add_u32 v10, v2, 10, v10")
        a(f"s_lshl_b32 s58, s3, 15\nv_add_u32 v21, s58, v10\nv_add_u32 v22, {QL}, v10")
        a("v_lshrrev_b32 v10, 2, v2\nv_lshl_add_u32 v10, v3, 2, v10")
        a("v_and_b32 v11, 7, v10\nv_lshlrev_b32 v11, 1, v11\nv_lshrrev_b32 v12, 3, v10\nv_or_b32 v11, v11, v12")
        a("v_bfe_u32 v12, v2, 1, 1\nv_xor_b32 v11, v11, v12\nv_lshlrev_b32 v11, 4, v11\nv_and_b32 v12, 1, v2\nv_lshl_add_u32 v11, v12, 3, v11")
        a("v_lshl_add_u32 v23, v10, 10, v11\ns_lshl_b32 s58, s3, 8\nv_add_u32 v23, s58, v23")
        if npre:
            a("s_cmp_eq_u32 s57, 1\ns_cbranch_scc1 L_nopre")
            if self.uvpos == "pre": tw("wuv")
            if self.wopos == "pre": tw("wo")
            a(f"s_waitcnt vmcnt({npre})\ns_branch L_att\nL_nopre:")
        a("s_waitcnt vmcnt(0)")
        a("L_att:\ns_barrier")
        self.stamp(4)
        a("s_mov_b32 s59, 0\nL_qk:")
        for s in range(16):
            a(f"v_xor_b32 v10, {s<<4}, v22\nds_read_b128 v[{64+4*s}:{67+4*s}], v10")
        a(f"v_lshlrev_b32 v10, 2, v1\nv_add_u32 v10, {QC}, v10\nds_read_b32 v24, v10\nds_read_b32 v25, v10 offset:256")
        for half in range(2):
            for s in range(8 * half, 8 * half + 8):
                r = 128 + 8 * (s & 7)
                a(f"v_xor_b32 v10, {s<<4}, v21\nds_read_b128 v[{r}:{r+3}], v10\nds_read_b128 v[{r+4}:{r+7}], v10 offset:16384")
            if half == 0:
                a("s_waitcnt lgkmcnt(15)")
                for k in range(2):
                    b = 64 + 32 * k
                    a(f"v_add3_u32 v{26+k}, v{b}, v{b+1}, s4")
                    for j in range(2, 32, 2):
                        a(f"v_add3_u32 v{26+k}, v{b+j}, v{b+j+1}, v{26+k}")
                a("v_xor_b32 v26, v26, v24\nv_xor_b32 v27, v27, v25\nv_or_b32 v26, v26, v27")
                a(f"v_cmp_ne_u32 vcc, 0, v26\ns_cmp_eq_u64 vcc, 0\ns_cbranch_scc1 L_qk_ok\ns_add_u32 s59, s59, 1\ns_cmp_ge_u32 s59, {self.maxpoll}\ns_cbranch_scc1 L_qk_ok")
                a("s_waitcnt lgkmcnt(0)\ns_barrier")
                if self.stamps: a("s_add_u32 s101, s101, 100")
                qgather()
                a("s_waitcnt vmcnt(0)\ns_barrier\ns_branch L_qk\nL_qk_ok:")
            for s in range(8 * half, 8 * half + 8):
                r = 128 + 8 * (s & 7)
                a(f"s_waitcnt lgkmcnt({min(15, 14-2*(s&7))})")
                for T in range(2):
                    c = "0" if s == 0 else f"v[{32+4*T}:{35+4*T}]"
                    a(f"v_mfma_f32_16x16x32_bf16 v[{32+4*T}:{35+4*T}], v[{r+4*T}:{r+3+4*T}], v[{64+4*s}:{67+4*s}], {c}")
        a("v_max3_f32 v40, v32, v33, v34\nv_max3_f32 v41, v35, v36, v37\nv_max3_f32 v40, v40, v38, v39\nv_max_f32 v40, v40, v41")
        self.allreduce([40], "v_max_f32", [41], rows=False)
        a(f"v_lshlrev_b32 v42, 2, v2\ns_lshl_b32 s58, s3, 6\nv_add_u32 v42, {PM}, v42\nv_add_u32 v43, s58, v42")
        a("ds_write_b32 v43, v40\ns_waitcnt lgkmcnt(0)\ns_barrier")
        a("ds_read_b32 v44, v42\nds_read_b32 v45, v42 offset:64\nds_read_b32 v46, v42 offset:128\nds_read_b32 v47, v42 offset:192")
        for u in range(8): a(f"v_xor_b32 v{48+u}, {u<<5}, v23")
        a("s_waitcnt lgkmcnt(0)\nv_max3_f32 v40, v44, v45, v46\nv_max_f32 v40, v40, v47")
        for i in range(8): a(f"v_sub_f32 v{32+i}, v{32+i}, v40")
        for i in range(8): a(f"v_exp_f32 v{32+i}, v{32+i}")
        a("v_add_f32 v41, v32, v33\nv_add_f32 v44, v34, v35\nv_add_f32 v45, v36, v37\nv_add_f32 v46, v38, v39")
        a("v_cvt_pk_bf16_f32 v56, v32, v33\nv_cvt_pk_bf16_f32 v57, v34, v35\nv_cvt_pk_bf16_f32 v58, v36, v37\nv_cvt_pk_bf16_f32 v59, v38, v39")
        a(f"s_lshl_b32 s58, s3, 10\nv_add_u32 v10, {PP}, v4\nv_add_u32 v11, s58, v10\nds_write_b128 v11, v[56:59]")
        a("v_add_f32 v41, v41, v44\nv_add_f32 v45, v45, v46\nv_add_f32 v41, v41, v45")
        self.allreduce([41], "v_add_f32", [44], rows=False)
        a(f"ds_write_b32 v43, v41 offset:{PL-PM}")
        def vreads(kk, dst):
            for u in range(8):
                for hf in range(2):
                    r = dst + 4 * u + 2 * hf
                    a(f"ds_read_b64_tr_b16 v[{r}:{r+1}], v{48+u} offset:{(kk&1)*32768+hf*16384}")
        a("s_waitcnt lgkmcnt(0)\ns_barrier")
        for kk in range(4): a(f"ds_read_b128 v[{64+4*kk}:{67+4*kk}], v10 offset:{1024*kk}")
        a(f"v_lshlrev_b32 v11, 4, v3\nv_add_u32 v11, {PM}, v11")
        for kk in range(4): a(f"ds_read_b128 v[{80+4*kk}:{83+4*kk}], v11 offset:{PL-PM+64*kk}")
        vreads(0, 128)
        for kk in range(4):
            if kk == 1:
                for u in range(8): a(f"v_add_u32 v{48+u}, 0x10000, v{48+u}")
            cur = 128 + 32 * (kk & 1)
            if kk < 3:
                nxt = 128 + 32 * ((kk + 1) & 1)
            for u in range(8):
                if kk < 3 and kk != 1:
                    for hf in range(2):
                        r = nxt + 4 * u + 2 * hf
                        a(f"ds_read_b64_tr_b16 v[{r}:{r+1}], v{48+u} offset:{32768+hf*16384}")
                elif kk == 1:
                    for hf in range(2):
                        r = nxt + 4 * u + 2 * hf
                        a(f"ds_read_b64_tr_b16 v[{r}:{r+1}], v{48+u} offset:{hf*16384}")
                out = 16 if kk < 3 else 14 - 2 * u
                a(f"s_waitcnt lgkmcnt({min(15, out)})") if (kk == 3 or True) else None
                c = "0" if kk == 0 else f"v[{96+4*u}:{99+4*u}]"
                a(f"v_mfma_f32_16x16x32_bf16 v[{96+4*u}:{99+4*u}], v[{64+4*kk}:{67+4*kk}], v[{cur+4*u}:{cur+3+4*u}], {c}")
        for r in range(4):
            a(f"v_add_f32 v{80+r}, v{80+r}, v{84+r}\nv_add_f32 v{88+r}, v{88+r}, v{92+r}")
        for r in range(4): a(f"v_add_f32 v{80+r}, v{80+r}, v{88+r}")
        for r in range(4): a(f"v_rcp_f32 v{84+r}, v{80+r}")
        a(f"v_and_b32 v10, 3, v2\nv_lshl_add_u32 v11, v3, 2, v10\nv_lshlrev_b32 v11, 2, v11\nv_add_u32 v11, {PM}, v11")
        a("ds_read_b32 v44, v11\nds_read_b32 v45, v11 offset:64\nds_read_b32 v46, v11 offset:128\nds_read_b32 v47, v11 offset:192")
        for u in range(8):
            for r in range(4): a(f"v_mul_f32 v{96+4*u+r}, v{96+4*u+r}, v{84+r}")
        for r in range(4):
            for j in range(4): a(f"v_cvt_pk_bf16_f32 v{128+4*r+j}, v{96+8*j+r}, v{100+8*j+r}")
        a(f"v_lshlrev_b32 v12, 4, v2\nv_lshl_add_u32 v12, v3, 12, v12")
        a(f"s_lshl_b32 s5, s56, 15\ns_lshl_b32 s58, s57, 14\ns_add_u32 s5, s5, s58\ns_lshl_b32 s58, s3, 8\ns_add_u32 s5, s5, s58\ns_add_u32 s5, s5, {H3O}")
        for r in range(4):
            a(f"buffer_store_dwordx4 v[{128+4*r}:{131+4*r}], v12, {WS}, s5 offen offset:{1024*r} sc1")
        for r in range(4):
            a(f"v_add3_u32 v{32+r}, v{128+4*r}, v{129+4*r}, v{130+4*r}\nv_add_u32 v{32+r}, v{32+r}, v{131+4*r}")
        self.allreduce([32, 33, 34, 35], "v_add_u32", [], x16=False, x32=False)
        a("v_cmp_eq_u32 vcc, 1, v10\nv_cmp_eq_u32 s[60:61], 2, v10\nv_cmp_eq_u32 s[62:63], 3, v10")
        a("v_cndmask_b32 v32, v32, v33, vcc\nv_cndmask_b32 v80, v80, v81, vcc")
        a("v_cndmask_b32 v32, v32, v34, s[60:61]\nv_cndmask_b32 v80, v80, v82, s[60:61]")
        a("v_cndmask_b32 v37, v32, v35, s[62:63]\nv_cndmask_b32 v80, v80, v83, s[62:63]")
        a("v_log_f32 v80, v80\ns_waitcnt lgkmcnt(0)\nv_max3_f32 v44, v44, v45, v46\nv_max_f32 v44, v44, v47\nv_add_f32 v36, v44, v80")
        a("v_add_u32 v37, s4, v37\nv_mov_b32 v38, s4\nv_mov_b32 v39, 0")
        a("v_lshl_add_u32 v11, v3, 2, v10\nv_lshlrev_b32 v11, 4, v11")
        a(f"s_lshl_b32 s5, s56, 11\ns_lshl_b32 s58, s57, 10\ns_add_u32 s5, s5, s58\ns_lshl_b32 s58, s3, 8\ns_add_u32 s5, s5, s58\ns_add_u32 s5, s5, {H3S}")
        a("v_cmp_gt_u32 vcc, 4, v2\ns_and_saveexec_b64 s[62:63], vcc")
        a(f"buffer_store_dwordx4 v[36:39], v11, {WS}, s5 offen sc1\ns_mov_b64 exec, s[62:63]")
        self.stamp(5)
        a("s_cmp_eq_u32 s57, 1\ns_cbranch_scc1 L_U")
        if self.uvpos == "post": tw("wuv")
        if self.wopos == "post": tw("wo")
        a("v_lshlrev_b32 v16, 4, v2\nv_lshl_add_u32 v16, v3, 15, v16")
        a(f"s_lshl_b32 s5, s3, 20\ns_lshl_b32 s58, s54, 10\ns_add_u32 s5, s5, s58\ns_lshl_b32 s58, s55, 8\ns_add_u32 s5, s5, s58\ns_add_u32 s5, s5, {H3O}")
        a("s_and_b32 s58, s3, 1\nv_lshrrev_b32 v10, 3, v2\nv_xor_b32 v10, s58, v10\nv_lshlrev_b32 v10, 5, v10\nv_and_b32 v11, 7, v2\nv_lshl_add_u32 v10, v11, 2, v10\nv_add_u32 v10, v10, v3\nv_lshlrev_b32 v17, 11, v10")
        a(f"s_lshr_b32 s6, s3, 1\ns_lshl_b32 s6, s6, 17\ns_lshr_b32 s58, s54, 4\ns_lshl_b32 s58, s58, 10\ns_add_u32 s6, s6, s58\ns_lshl_b32 s58, s55, 8\ns_add_u32 s6, s6, s58\ns_and_b32 s58, s54, 15\ns_lshl_b32 s58, s58, 4\ns_add_u32 s6, s6, s58\ns_add_u32 s6, s6, {H3S}")
        a("s_lshr_b32 s58, s3, 1\nv_bfe_u32 v10, v1, 3, 1\nv_cmp_eq_u32 vcc, s58, v10")
        for j in range(4): a(f"v_cndmask_b32 v{24+j}, 0, v{6+j}, vcc")
        if self.ack3: a("s_waitcnt vmcnt(0)")
        self.stamp(6)
        self.poll_head("h3")
        a(f"buffer_load_dwordx4 v[20:23], v17, {WS}, s6 offen sc1")
        for i in range(8):
            a(f"s_add_u32 s58, s5, {i<<17}\nbuffer_load_dwordx4 v[{64+4*i}:{67+4*i}], v16, {WS}, s58 offen sc1")
        a("s_waitcnt vmcnt(8)")
        a("v_xor_b32 v28, s4, v22\nv_mov_b32 v29, v20")
        self.allreduce([29], "v_max_f32", [30])
        a("v_sub_f32 v29, v20, v29\nv_exp_f32 v29, v29\nv_subrev_u32 v21, s4, v21\nv_mov_b32 v30, v29")
        self.allreduce([30], "v_add_f32", [31])
        a("v_rcp_f32 v30, v30\ns_nop 0\nv_mul_f32 v29, v29, v30\nv_cvt_pk_bf16_f32 v29, v29, v29")
        for i in range(8):
            for j in range(4):
                a(f"v_and_b32_dpp v{128+4*i+j}, v29, v{24+j} row_newbcast:{i} row_mask:0xf bank_mask:0xf")
        a("s_waitcnt vmcnt(0)")
        for i in range(8):
            a(f"v_add3_u32 v{32+i}, v{64+4*i}, v{65+4*i}, v{66+4*i}")
        for i in range(8):
            a(f"v_add_u32 v{32+i}, v{32+i}, v{67+4*i}")
        self.allreduce(list(range(32, 40)), "v_add_u32", [], x16=False, x32=False)
        for i in range(8):
            a(f"v_xor_b32_dpp v{32+i}, v21, v{32+i} row_newbcast:{i} row_mask:0xf bank_mask:0xf")
        a("v_or3_b32 v28, v28, v32, v33\nv_or3_b32 v34, v34, v35, v36\nv_or3_b32 v37, v37, v38, v39\nv_or3_b32 v28, v28, v34, v37")
        self.poll_tail("h3", 28)
        for i in range(8):
            c = "0" if i == 0 else "v[12:15]"
            a(f"v_mfma_f32_16x16x32_bf16 v[12:15], v[{128+4*i}:{131+4*i}], v[{64+4*i}:{67+4*i}], {c}")
        a(f"v_and_b32 v10, 1, v3\nv_lshlrev_b32 v10, 4, v10\nv_lshl_add_u32 v10, v2, 5, v10\ns_lshl_b32 s58, s3, 9\ns_add_u32 s58, s58, {CL}\nv_add_u32 v10, s58, v10")
        a("s_lshr_b32 s58, s3, 1\nv_lshrrev_b32 v11, 1, v3\nv_cmp_eq_u32 vcc, s58, v11\ns_and_saveexec_b64 s[62:63], vcc")
        a("s_nop 4\nds_write_b128 v10, v[12:15]\ns_mov_b64 exec, s[62:63]")
        a(f"v_bfe_u32 v10, v1, 3, 1\nv_lshlrev_b32 v10, 10, v10\nv_lshl_add_u32 v10, v3, 5, v10\ns_lshl_b32 s58, s3, 7\ns_add_u32 s58, s58, {CL}\nv_add_u32 v10, s58, v10")
        a("s_waitcnt lgkmcnt(0)\ns_barrier")
        self.stamp(7)
        a("ds_read_b128 v[32:35], v10\nds_read_b128 v[36:39], v10 offset:16\nds_read_b128 v[40:43], v10 offset:512\nds_read_b128 v[44:47], v10 offset:528")
        a("s_waitcnt lgkmcnt(0)")
        for i in range(8): a(f"v_add_f32 v{32+i}, v{32+i}, v{40+i}")
        for i in range(8): a(f"v_cvt_pk_bf16_f32 v{32+i}, v{32+i}, v{32+i}")
        for i in range(8):
            for j in range(4): a(f"v_and_b32 v{128+4*i+j}, v{32+i}, v{6+j}")
        for i in range(8):
            c = "0" if i == 0 else "v[12:15]"
            a(f"v_mfma_f32_16x16x32_bf16 v[12:15], v[{128+4*i}:{131+4*i}], v[{192+4*i}:{195+4*i}], {c}")
        a(f"s_lshl_b32 s5, s54, 4\ns_lshl_b32 s58, s55, 2\ns_add_u32 s5, s5, s58\ns_add_u32 s5, s5, s3\ns_lshl_b32 s5, s5, 10\ns_add_u32 s5, s5, {H4O}")
        self.granule_std()
        a(f"buffer_store_dwordx4 v[12:15], v4, {WS}, s5 offen sc1")
        a(f"s_lshl_b32 s5, s54, 14\ns_add_u32 s5, s5, {H4O}")
        self.stage2("h4", ffn=False)
        a(f"s_lshl_b32 s5, s55, 5\ns_add_u32 s5, s5, s54\ns_lshl_b32 s5, s5, 10\ns_add_u32 s5, s5, {H5O}")
        self.reduce4_publish()
        self.stamp(9)
        a("s_branch L_fin")
        a("L_U:")
        a("s_and_b32 s55, s56, 15\ns_cmp_ge_u32 s55, 14\ns_cbranch_scc1 L_R")
        a("s_cmp_ge_u32 s55, 6\ns_cbranch_scc1 L_fin\ns_mul_i32 s54, s52, 6\ns_add_u32 s54, s54, s55\ns_cmp_ge_u32 s54, 44\ns_cbranch_scc1 L_fin")
        a("s_and_b32 s55, s54, 3\ns_lshr_b32 s54, s54, 2")
        a("s_lshl_b32 s6, s55, 1\ns_lshr_b32 s58, s3, 1\ns_add_u32 s6, s6, s58")
        a("s_lshl_b32 s58, s6, 7")
        self.ln_ops("s58")
        a(f"s_mov_b32 s58, {16*2752}\nv_mul_lo_u32 v11, v3, s58\nv_lshl_add_u32 v11, v2, 4, v11")
        a(f"s_mul_i32 s5, s6, {64*2752}\ns_lshl_b32 s58, s54, 8\ns_add_u32 s5, s5, s58")
        a("s_bitcmp1_b32 s3, 0\ns_cbranch_scc1 L_w3")
        for m, nxt in (("w1", "s_branch L_w13d\nL_w3:"), ("w3", "L_w13d:")):
            for i in range(16):
                a(f"buffer_load_dwordx4 v[{64+4*i}:{67+4*i}], v11, {srd(m)}, s5 offen{pw}\ns_add_u32 s5, s5, 2752")
            a(nxt)
        a("s_lshl_b32 s5, s54, 17\ns_lshl_b32 s58, s3, 15\ns_add_u32 s5, s5, s58\ns_lshl_b32 s58, s55, 8\ns_add_u32 s5, s5, s58")
        for i in range(8):
            a(f"buffer_load_dwordx4 v[{224+4*i}:{227+4*i}], v5, {srd('w2')}, s5 offen offset:{1024*(i&3)}{pw}")
            if i == 3: a("s_add_u32 s5, s5, 4096")
        a("s_waitcnt vmcnt(24)")
        self.ln_compute()
        self.gemv16(8)
        a(f"s_lshl_b32 s5, s54, 1\ns_and_b32 s58, s3, 1\ns_add_u32 s5, s5, s58\ns_lshl_b32 s5, s5, 3\ns_add_u32 s5, s5, s6\ns_lshl_b32 s5, s5, 10\ns_add_u32 s5, s5, {HGO}")
        self.granule_std()
        a(f"buffer_store_dwordx4 v[12:15], v4, {WS}, s5 offen sc1")
        self.stamp(6)
        a(f"s_lshl_b32 s5, s54, 14\ns_add_u32 s5, s5, {HGO}")
        self.stage2("hg", ffn=True)
        a(f"s_mul_i32 s5, s55, 12\ns_add_u32 s5, s5, s54\ns_lshl_b32 s5, s5, 10\ns_add_u32 s5, s5, {HFO}")
        self.reduce4_publish("u")
        self.stamp(9)
        a("s_branch L_fin")
        a("L_R:")
        a("s_cmp_lg_u32 s3, 0\ns_cbranch_scc1 L_fin")
        a("s_sub_u32 s55, s55, 14\ns_lshl_b32 s54, s52, 1\ns_add_u32 s54, s54, s55\ns_and_b32 s55, s54, 3\ns_lshr_b32 s54, s54, 2")
        a("s_lshr_b32 s5, s55, 1\ns_lshl_b32 s5, s5, 10\ns_lshl_b32 s58, s54, 8\ns_add_u32 s5, s5, s58\ns_and_b32 s58, s55, 1\ns_lshl_b32 s58, s58, 3\ns_add_u32 s62, s5, s58")
        a(f"v_lshlrev_b32 v18, 4, v2\nbuffer_load_dwordx2 v[20:21], v18, {srd('x')}, s62 offen")
        a("v_cmp_gt_u32 vcc, 4, v2\nv_mov_b32 v10, 0x3f803f80")
        for j in range(4): a(f"v_and_b32 v{24+j}, v10, v{6+j}\nv_cndmask_b32 v{24+j}, 0, v{24+j}, vcc")
        a("v_lshl_add_u32 v16, v3, 10, v18")
        a(f"s_mul_i32 s5, s54, {12*1024}\ns_lshl_b32 s58, s55, 8\ns_add_u32 s5, s5, s58\ns_add_u32 s5, s5, {HFO}")
        a(f"s_lshl_b32 s6, s54, 15\ns_add_u32 s6, s6, s58\ns_add_u32 s6, s6, {H5O}")
        n = self.rdelay
        while n > 0:
            a(f"s_sleep {min(n,127)}"); n -= 127
        self.poll_head("hf")
        for i in range(3):
            a(f"s_add_u32 s58, s5, {4096*i}\nbuffer_load_dwordx4 v[{64+4*i}:{67+4*i}], v16, {WS}, s58 offen sc1")
        a("s_waitcnt vmcnt(0)")
        a("v_cmp_eq_u32 vcc, 3, v3\nv_mov_b32 v10, s4\nv_mov_b32 v11, 0")
        a("v_cndmask_b32 v72, v72, v11, vcc\nv_cndmask_b32 v73, v73, v11, vcc\nv_cndmask_b32 v74, v74, v10, vcc\nv_cndmask_b32 v75, v75, v11, vcc")
        a("v_xor_b32 v12, s4, v66\nv_xor_b32 v13, s4, v70\nv_xor_b32 v14, s4, v74\nv_or3_b32 v12, v12, v13, v14")
        a("s_sleep 8")
        self.poll_tail("hf", 12)
        for i in range(3):
            c = "0" if i == 0 else "v[32:35]"
            a(f"v_mfma_f32_16x16x32_bf16 v[32:35], v[24:27], v[{64+4*i}:{67+4*i}], {c}")
        for r in range(4): self.rbf(32 + r)
        self.silu(32, 4, 36)
        for r in range(4): self.rbf(32 + r)
        a("v_lshlrev_b32 v40, 16, v20\nv_and_b32 v41, 0xffff0000, v20\nv_lshlrev_b32 v42, 16, v21\nv_and_b32 v43, 0xffff0000, v21")
        self.stamp(8)
        self.poll_head("h5")
        for i in range(8):
            a(f"s_add_u32 s58, s6, {4096*i}\nbuffer_load_dwordx4 v[{64+4*i}:{67+4*i}], v16, {WS}, s58 offen sc1")
        a("s_waitcnt vmcnt(0)")
        a("v_xor_b32 v12, s4, v66\nv_xor_b32 v13, s4, v70")
        for i in range(2, 8, 2):
            a(f"v_xor_b32 v14, s4, v{66+4*i}\nv_xor_b32 v15, s4, v{70+4*i}\nv_or3_b32 v12, v12, v14, v15")
        a("v_or_b32 v12, v12, v13")
        self.poll_tail("h5", 12)
        for i in range(8):
            c = "0" if i == 0 else "v[44:47]"
            a(f"v_mfma_f32_16x16x32_bf16 v[44:47], v[24:27], v[{64+4*i}:{67+4*i}], {c}")
        for r in range(4): self.rbf(44 + r)
        for r in range(4): a(f"v_mul_f32 v{44+r}, v{44+r}, v{32+r}")
        for r in range(4): self.rbf(44 + r)
        for r in range(4): a(f"v_add_f32 v{44+r}, v{44+r}, v{40+r}")
        a("v_cvt_pk_bf16_f32 v44, v44, v45\nv_cvt_pk_bf16_f32 v45, v46, v47")
        a("v_cmp_gt_u32 vcc, 16, v1\ns_and_saveexec_b64 s[60:61], vcc")
        a(f"buffer_store_dwordx2 v[44:45], v18, {srd('out')}, s62 offen\ns_mov_b64 exec, s[60:61]")
        a("s_or_b32 s58, s54, s55\ns_cmp_lg_u32 s58, 0\ns_cbranch_scc1 L_noep")
        a(f"v_mov_b32 v10, 0\nv_mov_b32 v11, s7\nv_cmp_eq_u32 vcc, 0, v1\ns_and_saveexec_b64 s[60:61], vcc\nbuffer_store_dword v11, v10, {WS}, 0 offen sc1\ns_mov_b64 exec, s[60:61]")
        a("L_noep:")
        self.stamp(10)
        a("L_fin:")
        if self.stamps:
            a(f"s_lshl_b32 s5, s2, 2\ns_add_u32 s5, s5, s3\ns_lshl_b32 s5, s5, 6\ns_add_u32 s5, s5, {STAMP_OFF}")
            a("v_mov_b32 v10, 0\nv_cmp_eq_u32 vcc, 0, v1\ns_and_saveexec_b64 s[62:63], vcc")
            for k in range(14):
                a(f"v_mov_b32 v{16+k}, s{88+k}")
            for k in range(14):
                a(f"buffer_store_dword v{16+k}, v10, {WS}, s5 offen offset:{4*k}")
        a("L_end:")
        return self.wrap()
    def silu(self, v, n, t):
        a = self.a
        for r in range(n): a(f"v_mul_f32 v{t+r}, {hex(f2u(-1.4426950408889634))}, v{v+r}")
        for r in range(n): a(f"v_exp_f32 v{t+r}, v{t+r}")
        for r in range(n): a(f"v_add_f32 v{t+r}, 1.0, v{t+r}")
        for r in range(n): a(f"v_rcp_f32 v{t+r}, v{t+r}")
        for r in range(n): a(f"v_mul_f32 v{v+r}, v{v+r}, v{t+r}")
    def stage2(self, name, ffn):
        a = self.a
        WS = srd("ws")
        a("v_and_b32 v10, 3, v1\nv_lshlrev_b32 v10, 10, v10\nv_bfe_u32 v11, v1, 2, 2\nv_lshl_add_u32 v10, v11, 8, v10\nv_lshl_add_u32 v10, v3, 4, v10\ns_lshl_b32 s58, s3, 6\ns_add_u32 s5, s5, s58")
        if self.ack4: a("s_waitcnt vmcnt(0)")
        self.poll_head(name)
        for k in range(4):
            a(f"s_add_u32 s58, s5, {4096*k}\nbuffer_load_dwordx4 v[{64+4*k}:{67+4*k}], v10, {WS}, s58 offen sc1")
        a("s_waitcnt vmcnt(0)")
        a("v_xor_b32 v11, s4, v66\nv_xor_b32 v12, s4, v70\nv_xor_b32 v13, s4, v74\nv_xor_b32 v14, s4, v78\nv_or3_b32 v11, v11, v12, v13\nv_or_b32 v11, v11, v14")
        self.poll_tail(name, 11)
        if not ffn: self.stamp(8)
        for k in range(4):
            a(f"v_lshlrev_b32 v{32+4*k}, 16, v{64+4*k}\nv_and_b32 v{33+4*k}, 0xffff0000, v{64+4*k}\nv_lshlrev_b32 v{34+4*k}, 16, v{65+4*k}\nv_and_b32 v{35+4*k}, 0xffff0000, v{65+4*k}")
        for r in range(4): a(f"v_add_f32 v{32+r}, v{32+r}, v{36+r}\nv_add_f32 v{40+r}, v{40+r}, v{44+r}")
        if not ffn:
            for r in range(4): a(f"v_add_f32 v{32+r}, v{32+r}, v{40+r}")
            vs = [32, 33, 34, 35]
        else:
            vs = [32, 33, 34, 35, 40, 41, 42, 43]
        for q in ("[1,0,3,2]", "[2,3,0,1]"):
            for v in vs: a(f"v_add_f32_dpp v{v}, v{v}, v{v} quad_perm:{q} row_mask:0xf bank_mask:0xf")
        if ffn:
            for v in vs: self.rbf(v)
            self.silu(32, 4, 36)
            for r in range(4): self.rbf(32 + r)
            for r in range(4): a(f"v_mul_f32 v{32+r}, v{32+r}, v{40+r}")
            a("s_cmp_eq_u32 s54, 10\ns_cselect_b32 s58, s3, 0\ns_cmp_eq_u32 s58, 3\ns_cselect_b32 s58, 0, -1")
        a("v_cvt_pk_bf16_f32 v32, v32, v33\nv_cvt_pk_bf16_f32 v33, v34, v35")
        if ffn: a("v_and_b32 v32, s58, v32\nv_and_b32 v33, s58, v33")
        a("v_mov_b32_dpp v34, v32 row_half_mirror row_mask:0xf bank_mask:0xf\nv_mov_b32_dpp v35, v33 row_half_mirror row_mask:0xf bank_mask:0xf")
        a("v_and_b32 v11, 4, v1\nv_cmp_ne_u32 vcc, 0, v11")
        a("v_cndmask_b32 v36, v32, v34, vcc\nv_cndmask_b32 v37, v33, v35, vcc\nv_cndmask_b32 v38, v34, v32, vcc\nv_cndmask_b32 v39, v35, v33, vcc")
        a("s_mov_b32 s60, 0x01000100\ns_mov_b32 s61, 0x03020302")
        for i in range(8):
            a(f"v_perm_b32 v{40+i}, v{36+(i>>1)}, v{36+(i>>1)}, s{60+(i&1)}")
        for i in range(8):
            for j in range(4): a(f"v_and_b32 v{128+4*i+j}, v{40+i}, v{6+j}")
        for i in range(8):
            c = "0" if i == 0 else "v[12:15]"
            a(f"v_mfma_f32_16x16x32_bf16 v[12:15], v[{128+4*i}:{131+4*i}], v[{224+4*i}:{227+4*i}], {c}")
    def reduce4_publish(self, sfx=""):
        a = self.a
        a(f"s_lshl_b32 s58, s3, 10\nv_add_u32 v10, {FR}, v4\nv_add_u32 v11, s58, v10")
        a("ds_write_b128 v11, v[12:15]\ns_waitcnt lgkmcnt(0)\ns_barrier")
        a(f"s_cmp_lg_u32 s3, 0\ns_cbranch_scc1 L_fin")
        a("ds_read_b128 v[16:19], v10 offset:1024\nds_read_b128 v[20:23], v10 offset:2048\nds_read_b128 v[24:27], v10 offset:3072\ns_waitcnt lgkmcnt(0)")
        for r in range(4): a(f"v_add_f32 v{12+r}, v{12+r}, v{16+r}\nv_add_f32 v{20+r}, v{20+r}, v{24+r}")
        for r in range(4): a(f"v_add_f32 v{12+r}, v{12+r}, v{20+r}")
        self.granule_std()
        a(f"buffer_store_dwordx4 v[12:15], v4, {srd('ws')}, s5 offen sc1")
    def wrap(self):
        hdr = open("cdna_kernels/" + NAME + ".s.ref").read().split("; Override")[0]
        return (hdr + f"; @launch grid=(256,1,1) block=(256,1,1) lds={LDS_BYTES}\n"
            f'.amdgcn_target "amdgcn-amd-amdhsa--gfx950"\n.text\n.globl {NAME}_kernel\n.p2align 8\n.type {NAME}_kernel,@function\n{NAME}_kernel:\n'
            + self.a.text() + f"""s_endpgm
.section .rodata,"a"
.p2align 6
.amdhsa_kernel {NAME}_kernel
  .amdhsa_next_free_vgpr 256
  .amdhsa_next_free_sgpr 102
  .amdhsa_accum_offset 256
  .amdhsa_group_segment_fixed_size 0
  .amdhsa_kernarg_size 104
  .amdhsa_user_sgpr_count 2
  .amdhsa_user_sgpr_kernarg_segment_ptr 1
  .amdhsa_system_sgpr_workgroup_id_x 1
  .amdhsa_float_denorm_mode_32 3
.end_amdhsa_kernel
""")
if __name__ == "__main__":
    import json
    out = sys.argv[1]
    kw = json.loads(sys.argv[2]) if len(sys.argv) > 2 else {}
    g = G(**kw)
    open(out, "w").write(g.gen())
    print(out, "instructions:", g.a.ninst)
```

```python
import sys
from emit import E
from asmlib import NAME, SIZES, STAMP_OFF

H1O  = 0x010000
H2O  = 0x050000
H2C  = 0x060000
H4O  = 0x080000
H5O  = 0x100000
HGO  = 0x120000
HFO  = 0x150000
H3S  = 0x180000
H3O  = 0x200000
QL  = 131072
SCR = 147456
QC  = SCR
PM  = SCR + 512
PL  = SCR + 768
PP  = SCR + 1024
CL  = SCR + 5120
FR  = SCR + 7168
LDS_BYTES = 163840

SRD = dict(x=8, ckv=12, wq=16, wuk=20, wuv=24, wo=28, w1=32, w3=36, w2=40, ws=44, out=48)
KOFF = dict(x=0, ckv=8, wq=16, wuk=24, wuv=32, wo=40, w1=56, w3=64, w2=72, out=80, ws=96)
def srd(n): return f"s[{SRD[n]}:{SRD[n]+3}]"
SCALE = (128 ** -0.5) * 1.4426950408889634
import struct
def f2u(f): return struct.unpack("<I", struct.pack("<f", f))[0]

class G:
    def __init__(self, front="SYM", stamps=False, W=10, qpos=32, pol_w="nt", pol_k="nt", pol_k2=None, uvpos="pre", wopos="post",
                 ps=2, maxpoll=4000, ack1=True, ack3=True, ack4=True, rdelay=0, amp=None, pre=None):
        self.__dict__.update(locals())
        self.a = E()
        if pol_k2 is None: self.pol_k2 = pol_k
    def stamp(self, k):
        if self.stamps:
            self.a(f"s_memrealtime s[60:61]\ns_waitcnt lgkmcnt(0)\ns_mov_b32 s{88+k}, s60")
    def allreduce(self, vs, op, tmp, rows=True, x16=True, x32=True):
        a = self.a
        if rows:
            for r in (8, 4, 2, 1):
                for v in vs: a(f"{op}_dpp v{v}, v{v}, v{v} row_ror:{r} row_mask:0xf bank_mask:0xf")
        for en, ins in ((x16, "v_permlane16_swap_b32"), (x32, "v_permlane32_swap_b32")):
            if not en: continue
            for v, t in zip(vs, tmp): a(f"v_mov_b32 v{t}, v{v}")
            for v, t in zip(vs, tmp): a(f"{ins} v{t}, v{v}")
            for v, t in zip(vs, tmp): a(f"{op} v{v}, v{t}, v{v}")
    def rbf(self, v, cnt=1):
        self.a(f"v_cvt_pk_bf16_f32 v{v}, v{v}, v{v}\nv_and_b32 v{v}, 0xffff0000, v{v}")
    def poll_head(self, name):
        self.a(f"s_mov_b32 s59, 0\nL_{name}:")
    def poll_tail(self, name, bad, mask=True):
        a = self.a
        a(f"v_cmp_ne_u32 vcc, 0, v{bad}\ns_cmp_eq_u64 vcc, 0\ns_cbranch_scc1 L_{name}_ok")
        if self.ps: a(f"s_sleep {self.ps}")
        a(f"s_add_u32 s59, s59, 1\ns_cmp_lt_u32 s59, {self.maxpoll}\ns_cbranch_scc1 L_{name}\nL_{name}_ok:")
    def ln_ops(self, sP):
        a = self.a
        a(f"""v_bfe_u32 v10, v1, 3, 1
        v_lshlrev_b32 v10, 10, v10
        v_lshl_add_u32 v10, v3, 5, v10
        buffer_load_dwordx4 v[16:19], v4, {srd('x')}, 0 offen
        buffer_load_dwordx4 v[20:23], v4, {srd('x')}, 0 offen offset:1024
        buffer_load_dwordx4 v[24:27], v10, {srd('x')}, {sP} offen
        buffer_load_dwordx4 v[28:31], v10, {srd('x')}, {sP} offen offset:16""")
    def ln_compute(self):
        a = self.a
        for r in range(2):
            for j in range(4):
                a(f"v_lshlrev_b32 v{32+8*r+2*j}, 16, v{16+4*r+j}\nv_and_b32 v{33+8*r+2*j}, 0xffff0000, v{16+4*r+j}")
        for r in range(2):
            b = 32 + 8 * r
            a(f"v_add_f32 v{48+r}, v{b}, v{b+1}\nv_add_f32 v{50+r}, v{b+2}, v{b+3}\nv_add_f32 v{52+r}, v{b+4}, v{b+5}\nv_add_f32 v{54+r}, v{b+6}, v{b+7}")
        for r in range(2):
            a(f"v_add_f32 v{48+r}, v{48+r}, v{50+r}\nv_add_f32 v{52+r}, v{52+r}, v{54+r}")
        for r in range(2):
            a(f"v_add_f32 v{48+r}, v{48+r}, v{52+r}")
        self.allreduce([48, 49], "v_add_f32", [50, 51])
        a("v_mul_f32 v48, 0x3b000000, v48\nv_mul_f32 v49, 0x3b000000, v49")
        for j in range(8):
            for r in range(2):
                a(f"v_sub_f32 v{32+8*r+j}, v{32+8*r+j}, v{48+r}")
        for r in range(2):
            a(f"v_mul_f32 v{52+r}, v{32+8*r}, v{32+8*r}\nv_mul_f32 v{54+r}, v{33+8*r}, v{33+8*r}")
        for j in range(2, 8, 2):
            for r in range(2):
                a(f"v_fmac_f32 v{52+r}, v{32+8*r+j}, v{32+8*r+j}\nv_fmac_f32 v{54+r}, v{33+8*r+j}, v{33+8*r+j}")
        for r in range(2):
            a(f"v_add_f32 v{52+r}, v{52+r}, v{54+r}")
        self.allreduce([52, 53], "v_add_f32", [50, 51])
        a("v_and_b32 v50, 8, v1\nv_cmp_ne_u32 vcc, 0, v50")
        a("v_cndmask_b32 v48, v48, v49, vcc\nv_cndmask_b32 v52, v52, v53, vcc")
        a("v_mul_f32 v52, 0x3b000000, v52")
        self.rbf(48); self.rbf(52)
        a(f"v_add_f32 v52, {hex(f2u(1e-5))}, v52")
        self.rbf(52)
        a("v_sqrt_f32 v52, v52")
        self.rbf(52)
        a("v_rcp_f32 v52, v52")
        a("v_mul_f32 v48, v48, v52")
        for j in range(8):
            a(f"v_lshlrev_b32 v{32+2*j}, 16, v{24+j}\nv_and_b32 v{33+2*j}, 0xffff0000, v{24+j}")
        for i in range(16):
            a(f"v_fma_f32 v{32+i}, v{32+i}, v52, -v48")
        for i in range(16):
            a(f"v_cvt_pk_bf16_f32 v{32+i}, v{32+i}, v{32+i}")
        for i in range(16):
            for j in range(4):
                a(f"v_and_b32 v{128+4*i+j}, v{32+i}, v{6+j}")
    def gemv16(self, nwait_after=0):
        a = self.a
        for i in range(16):
            if i % 4 == 0: a(f"s_waitcnt vmcnt({12-i+nwait_after})")
            c = "0" if i == 0 else "v[12:15]"
            a(f"v_mfma_f32_16x16x32_bf16 v[12:15], v[{128+4*i}:{131+4*i}], v[{64+4*i}:{67+4*i}], {c}")
    def granule_std(self):
        self.a("v_cvt_pk_bf16_f32 v12, v12, v13\nv_cvt_pk_bf16_f32 v13, v14, v15\nv_mov_b32 v14, s4\nv_mov_b32 v15, 0")
    def get_tag(self):
        self.a("s_waitcnt lgkmcnt(0)\ns_add_u32 s7, s4, 1\ns_lshl_b32 s4, s7, 2\ns_and_b32 s4, s4, 0x3fff0000\ns_and_b32 s58, s7, 0x3fff\ns_or_b32 s4, s4, s58")
    def gen(self):
        a = self.a
        pw = " " + self.pol_w if self.pol_w else ""
        WS = srd("ws")
        a("s_cmp_ge_u32 s2, 256\ns_cbranch_scc1 L_end")
        if self.stamps: a("s_memrealtime s[60:61]")
        for n in ["ws", "x", "wq", "wuk", "ckv", "wuv", "wo", "w1", "w3", "w2", "out"]:
            a(f"s_load_dwordx2 s[{SRD[n]}:{SRD[n]+1}], s[0:1], {KOFF[n]}")
        a("v_lshrrev_b32 v10, 6, v0\nv_and_b32 v1, 63, v0\nv_and_b32 v2, 15, v0\nv_readfirstlane_b32 s3, v10")
        a("v_lshrrev_b32 v3, 4, v1\nv_lshlrev_b32 v4, 4, v1\nv_lshlrev_b32 v5, 4, v2\nv_lshl_add_u32 v5, v3, 13, v5")
        for n in SRD:
            a(f"s_mov_b32 s{SRD[n]+2}, {SIZES[n]}\ns_mov_b32 s{SRD[n]+3}, 0x20000")
        a("s_and_b32 s52, s2, 7\ns_lshr_b32 s53, s2, 3\ns_lshr_b32 s58, s53, 1\ns_lshl_b32 s56, s52, 4\ns_add_u32 s56, s56, s58\ns_and_b32 s57, s53, 1")
        if self.front == "SYM":
            a("s_lshr_b32 s54, s53, 3\ns_and_b32 s55, s53, 7")
        else:
            a("s_lshr_b32 s54, s53, 3\ns_and_b32 s55, s58, 3\ns_lshl_b32 s55, s55, 1\ns_and_b32 s58, s3, 1\ns_add_u32 s55, s55, s58")
        a("s_lshl_b32 s58, s52, 2\ns_add_u32 s54, s54, s58")
        a("v_and_b32 v10, 1, v1\nv_cmp_eq_u32 vcc, 1, v10\nv_mov_b32 v11, 0xffff\nv_mov_b32 v12, 0xffff0000\nv_cndmask_b32 v11, v11, v12, vcc\nv_bfe_u32 v10, v1, 1, 2")
        for j in range(4):
            a(f"v_cmp_eq_u32 vcc, {j}, v10\nv_cndmask_b32 v{6+j}, 0, v11, vcc")
        a("s_waitcnt lgkmcnt(0)")
        a(f"s_load_dword s4, s[{SRD['ws']}:{SRD['ws']+1}], 0")
        if self.stamps:
            a("s_mov_b32 s88, s60")
            for k in range(1, 14): a(f"s_mov_b32 s{88+k}, s60")
        if self.pre is not None:
            pp = " " + self.pre if self.pre else ""
            a("v_lshlrev_b32 v10, 4, v0")
            r = 16
            for (m, nb, mul) in [("wq", 16384, 16384), ("wuk", 16384, 16384), ("ckv", 65536, 65536), ("wuv", 16384, 16384), ("wo", 16384, 16384), ("w1", 8192, 5504), ("w3", 8192, 5504), ("w2", 8192, 5504)]:
                a(f"s_mul_i32 s5, s2, {mul}")
                for i in range(nb // 4096):
                    a(f"buffer_load_dwordx4 v[{r}:{r+3}], v10, {srd(m)}, s5 offen{pp}\ns_add_u32 s5, s5, 4096")
                    r += 4
            a("s_waitcnt vmcnt(0)\ns_barrier")
            self.stamp(11)
        nA = 1 if self.front == "SYM" else 2
        if self.front == "FS":
            a("s_cmp_eq_u32 s57, 1\ns_cbranch_scc1 L_nofront")
        a(f"s_cmp_ge_u32 s3, {2*nA}\ns_cbranch_scc1 L_fidle\ns_cmp_ge_u32 s3, {nA}\ns_cbranch_scc1 L_B")
        a("s_lshl_b32 s58, s55, 7")
        self.ln_ops("s58")
        a("v_lshlrev_b32 v11, 4, v2\nv_lshl_add_u32 v11, v3, 17, v11")
        a("s_lshl_b32 s5, s55, 19\ns_lshl_b32 s58, s54, 8\ns_add_u32 s5, s5, s58")
        for i in range(16):
            a(f"buffer_load_dwordx4 v[{64+4*i}:{67+4*i}], v11, {srd('wq')}, s5 offen{pw}\ns_add_u32 s5, s5, 8192")
        a("s_barrier")
        a("s_waitcnt vmcnt(16)")
        self.ln_compute()
        self.get_tag()
        self.gemv16()
        self.stamp(1)
        a("v_and_b32 v10, 16, v1\nv_cmp_ne_u32 vcc, 0, v10\nv_mov_b32 v10, s4\nv_mov_b32 v11, 0")
        a("v_cvt_pk_bf16_f32 v16, v12, v13\nv_cvt_pk_bf16_f32 v17, v14, v15")
        a("v_cndmask_b32 v12, v11, v16, vcc\nv_cndmask_b32 v13, v10, v17, vcc\nv_cndmask_b32 v14, v16, v10, vcc\nv_cndmask_b32 v15, v17, v11, vcc")
        a(f"s_lshl_b32 s5, s54, 3\ns_add_u32 s5, s5, s55\ns_lshl_b32 s5, s5, 10\ns_add_u32 s5, s5, {H1O}")
        a(f"buffer_store_dwordx4 v[12:15], v4, {WS}, s5 offen sc1")
        if self.ack1: a("s_waitcnt vmcnt(0)")
        a("s_barrier\ns_barrier\ns_branch L_tile")
        a("L_B:\ns_barrier")
        wu = SCR if self.front == "SYM" else 0
        if self.front == "SYM": a(f"s_mov_b32 s6, {wu}")
        else: a("s_and_b32 s6, s3, 1\ns_lshl_b32 s6, s6, 14")
        a("v_lshrrev_b32 v10, 1, v3\nv_lshlrev_b32 v10, 4, v10\nv_xor_b32 v10, v5, v10")
        a("s_lshl_b32 s5, s55, 19\ns_lshl_b32 s58, s54, 8\ns_add_u32 s5, s5, s58\ns_mov_b32 m0, s6")
        for i in range(16):
            a(f"v_xor_b32 v11, {((2*i)&15)<<4}, v10\nbuffer_load_dwordx4 v11, {srd('wuk')}, s5 offen{pw} lds\ns_add_u32 s5, s5, 32768\ns_add_u32 m0, m0, 1024")
        a("v_xor_b32 v16, v2, v3\nv_lshlrev_b32 v16, 4, v16\nv_lshl_add_u32 v16, v2, 9, v16\nv_add_u32 v16, s6, v16")
        for s in range(1, 4): a(f"v_xor_b32 v{16+s}, {s<<6}, v16")
        a("v_and_b32 v20, 7, v1\nv_lshlrev_b32 v20, 10, v20\nv_bfe_u32 v21, v1, 3, 1\nv_lshl_add_u32 v20, v21, 9, v20\nv_lshl_add_u32 v20, v3, 4, v20")
        self.get_tag()
        a(f"s_lshl_b32 s5, s54, 13\ns_add_u32 s5, s5, {H1O}")
        a("s_waitcnt vmcnt(0)")
        self.stamp(2)
        for t in range(4):
            for s in range(4):
                r = 64 + 16 * t + 4 * s
                a(f"ds_read_b128 v[{r}:{r+3}], v{16+s} offset:{(t&1)*8192+(t>>1)*256}")
        a("s_barrier")
        self.poll_head("h1")
        for s in range(4):
            r = 128 + 8 * s
            a(f"buffer_load_dwordx4 v[{r}:{r+3}], v20, {WS}, s5 offen offset:{64*s} sc1")
            a(f"buffer_load_dwordx4 v[{r+4}:{r+7}], v20, {WS}, s5 offen offset:{64*s+256} sc1")
        a("s_waitcnt vmcnt(0)")
        a("v_xor_b32 v10, s4, v129\nv_xor_b32 v11, s4, v134")
        for s in range(1, 4):
            a(f"v_xor_b32 v12, s4, v{129+8*s}\nv_xor_b32 v13, s4, v{134+8*s}\nv_or3_b32 v10, v10, v12, v13")
        a("v_or_b32 v10, v10, v11")
        self.poll_tail("h1", 10)
        self.stamp(3)
        a("s_waitcnt lgkmcnt(0)")
        for s in range(4):
            for t in range(4):
                c = "0" if s == 0 else f"v[{32+4*t}:{35+4*t}]"
                a(f"v_mfma_f32_16x16x32_bf16 v[{32+4*t}:{35+4*t}], v[{130+8*s}:{133+8*s}], v[{64+16*t+4*s}:{67+16*t+4*s}], {c}")
        for t in range(4):
            a(f"v_add_f32 v{32+4*t}, v{32+4*t}, v{33+4*t}\nv_add_f32 v{34+4*t}, v{34+4*t}, v{35+4*t}")
        for t in range(4):
            a(f"v_add_f32 v{32+4*t}, v{32+4*t}, v{34+4*t}")
        a("v_permlane16_swap_b32 v32, v36\nv_permlane16_swap_b32 v40, v44")
        a("v_add_f32 v32, v32, v36\nv_add_f32 v40, v40, v44")
        a(f"v_mul_f32 v32, {hex(f2u(SCALE))}, v32\nv_mul_f32 v40, {hex(f2u(SCALE))}, v40")
        a("v_cvt_pk_bf16_f32 v32, v32, v40")
        a("v_and_b32 v10, 31, v1\nv_lshlrev_b32 v10, 2, v10\nv_lshrrev_b32 v11, 5, v1\nv_lshl_add_u32 v10, v11, 15, v10")
        a(f"s_lshl_b32 s5, s54, 3\ns_add_u32 s5, s5, s55\ns_lshl_b32 s6, s5, 8\ns_add_u32 s6, s6, {H2C}\ns_lshl_b32 s5, s5, 7\ns_add_u32 s5, s5, {H2O}")
        a(f"buffer_store_dword v32, v10, {WS}, s5 offen sc1")
        a("v_mov_b32 v33, v32")
        self.allreduce([33], "v_add_u32", [34], x32=False)
        a("v_add_u32 v33, s4, v33\nv_lshlrev_b32 v10, 2, v1")
        a(f"buffer_store_dword v33, v10, {WS}, s6 offen sc1")
        a("s_barrier\ns_branch L_tile")
        a("L_fidle:\ns_barrier")
        self.get_tag()
        a("s_barrier\ns_barrier\ns_branch L_tile")
        if self.front == "FS":
            a("L_nofront:")
            self.get_tag()
        a("L_tile:")
        a("s_lshl_b32 s58, s3, 5\nv_xor_b32 v16, s58, v4\nv_xor_b32 v17, 128, v16\nv_xor_b32 v18, 16, v16\nv_xor_b32 v19, 144, v16")
        a("s_lshl_b32 s5, s56, 17\ns_lshl_b32 s6, s3, 10\ns_add_u32 s5, s5, s6")
        a(f"s_lshr_b32 s58, s56, 6\ns_lshl_b32 s62, s58, 15\ns_lshl_b32 s63, s57, 14\ns_add_u32 s62, s62, s63\ns_add_u32 s62, s62, s6\ns_add_u32 s62, s62, {H2O}")
        a(f"s_lshl_b32 s63, s57, 15\ns_lshl_b32 s58, s58, 7\ns_add_u32 s63, s63, s58\ns_and_b32 s58, s3, 1\ns_lshl_b32 s58, s58, 8\ns_add_u32 s63, s63, s58\ns_add_u32 s63, s63, {H2C}")
        a("v_lshlrev_b32 v20, 11, v2\nv_lshl_add_u32 v20, v3, 9, v20")
        def qgather():
            for j in range(4):
                a(f"s_add_u32 m0, s6, {QL+4096*j}\ns_add_u32 s58, s62, {4096*j}")
                a(f"buffer_load_dwordx4 v{16+j}, {WS}, s58 offen sc1 lds")
            a(f"s_and_b32 s58, s3, 1\ns_lshl_b32 s58, s58, 8\ns_add_u32 m0, s58, {QC}\ns_nop 0")
            a(f"buffer_load_dword v20, {WS}, s63 offen sc1 lds")
        def stream(pol, tagl):
            p = " " + pol if pol else ""
            for i in range(32):
                if i == self.qpos: qgather()
                if i >= self.W: a(f"s_waitcnt vmcnt({self.W-1})")
                a(f"s_add_u32 m0, s6, {4096*i}\ns_add_u32 s58, s5, {4096*i}")
                a(f"buffer_load_dwordx4 v{16+(i&3)}, {srd('ckv')}, s58 offen{p} lds")
            if self.qpos >= 32:
                a(f"s_waitcnt vmcnt({min(self.W-1, 4)})")
                qgather()
        if self.pol_k2 != self.pol_k:
            a("s_cmp_eq_u32 s57, 1\ns_cbranch_scc1 L_strS")
            stream(self.pol_k2, "F")
            a("s_branch L_strD\nL_strS:")
            stream(self.pol_k, "S")
            a("L_strD:")
        else:
            stream(self.pol_k, "")
        a("s_lshr_b32 s54, s53, 3\ns_lshl_b32 s58, s52, 2\ns_add_u32 s54, s54, s58\ns_bfe_u32 s55, s53, 0x20001")
        def tw(m):
            if m == "wuv":
                a("s_lshl_b32 s5, s55, 20\ns_lshl_b32 s58, s3, 15\ns_add_u32 s5, s5, s58\ns_lshl_b32 s58, s54, 8\ns_add_u32 s5, s5, s58")
                for i in range(8):
                    a(f"buffer_load_dwordx4 v[{192+4*i}:{195+4*i}], v5, {srd('wuv')}, s5 offen{pw}\ns_add_u32 s5, s5, {16*8192}")
            else:
                a("s_lshl_b32 s5, s54, 17\ns_lshl_b32 s58, s3, 15\ns_add_u32 s5, s5, s58\ns_lshl_b32 s58, s55, 8\ns_add_u32 s5, s5, s58")
                for i in range(8):
                    a(f"buffer_load_dwordx4 v[{224+4*i}:{227+4*i}], v5, {srd('wo')}, s5 offen offset:{1024*(i&3)}{pw}")
                    if i == 3: a("s_add_u32 s5, s5, 4096")
        npre = 8 * ((self.uvpos == "pre") + (self.wopos == "pre"))
        a("v_and_b32 v10, 7, v2\nv_lshlrev_b32 v10, 1, v10\nv_lshrrev_b32 v11, 3, v2\nv_or_b32 v10, v10, v11\nv_lshlrev_b32 v10, 4, v10")
        a("v_lshl_add_u32 v10, v3, 8, v10\nv_lshl_add_u32 v10, v2, 10, v10")
        a(f"s_lshl_b32 s58, s3, 15\nv_add_u32 v21, s58, v10\nv_add_u32 v22, {QL}, v10")
        a("v_lshrrev_b32 v10, 2, v2\nv_lshl_add_u32 v10, v3, 2, v10")
        a("v_and_b32 v11, 7, v10\nv_lshlrev_b32 v11, 1, v11\nv_lshrrev_b32 v12, 3, v10\nv_or_b32 v11, v11, v12")
        a("v_bfe_u32 v12, v2, 1, 1\nv_xor_b32 v11, v11, v12\nv_lshlrev_b32 v11, 4, v11\nv_and_b32 v12, 1, v2\nv_lshl_add_u32 v11, v12, 3, v11")
        a("v_lshl_add_u32 v23, v10, 10, v11\ns_lshl_b32 s58, s3, 8\nv_add_u32 v23, s58, v23")
        if npre:
            a("s_cmp_eq_u32 s57, 1\ns_cbranch_scc1 L_nopre")
            if self.uvpos == "pre": tw("wuv")
            if self.wopos == "pre": tw("wo")
            a(f"s_waitcnt vmcnt({npre})\ns_branch L_att\nL_nopre:")
        a("s_waitcnt vmcnt(0)")
        a("L_att:\ns_barrier")
        self.stamp(4)
        a("s_mov_b32 s59, 0\nL_qk:")
        for s in range(16):
            a(f"v_xor_b32 v10, {s<<4}, v22\nds_read_b128 v[{64+4*s}:{67+4*s}], v10")
        a(f"v_lshlrev_b32 v10, 2, v1\nv_add_u32 v10, {QC}, v10\nds_read_b32 v24, v10\nds_read_b32 v25, v10 offset:256")
        for half in range(2):
            for s in range(8 * half, 8 * half + 8):
                r = 128 + 8 * (s & 7)
                a(f"v_xor_b32 v10, {s<<4}, v21\nds_read_b128 v[{r}:{r+3}], v10\nds_read_b128 v[{r+4}:{r+7}], v10 offset:16384")
            if half == 0:
                a("s_waitcnt lgkmcnt(15)")
                for k in range(2):
                    b = 64 + 32 * k
                    a(f"v_add3_u32 v{26+k}, v{b}, v{b+1}, s4")
                    for j in range(2, 32, 2):
                        a(f"v_add3_u32 v{26+k}, v{b+j}, v{b+j+1}, v{26+k}")
                a("v_xor_b32 v26, v26, v24\nv_xor_b32 v27, v27, v25\nv_or_b32 v26, v26, v27")
                a(f"v_cmp_ne_u32 vcc, 0, v26\ns_cmp_eq_u64 vcc, 0\ns_cbranch_scc1 L_qk_ok\ns_add_u32 s59, s59, 1\ns_cmp_ge_u32 s59, {self.maxpoll}\ns_cbranch_scc1 L_qk_ok")
                a("s_waitcnt lgkmcnt(0)\ns_barrier")
                if self.stamps: a("s_add_u32 s101, s101, 100")
                qgather()
                a("s_waitcnt vmcnt(0)\ns_barrier\ns_branch L_qk\nL_qk_ok:")
            for s in range(8 * half, 8 * half + 8):
                r = 128 + 8 * (s & 7)
                a(f"s_waitcnt lgkmcnt({min(15, 14-2*(s&7))})")
                for T in range(2):
                    c = "0" if s == 0 else f"v[{32+4*T}:{35+4*T}]"
                    a(f"v_mfma_f32_16x16x32_bf16 v[{32+4*T}:{35+4*T}], v[{r+4*T}:{r+3+4*T}], v[{64+4*s}:{67+4*s}], {c}")
        a("v_max3_f32 v40, v32, v33, v34\nv_max3_f32 v41, v35, v36, v37\nv_max3_f32 v40, v40, v38, v39\nv_max_f32 v40, v40, v41")
        self.allreduce([40], "v_max_f32", [41], rows=False)
        a(f"v_lshlrev_b32 v42, 2, v2\ns_lshl_b32 s58, s3, 6\nv_add_u32 v42, {PM}, v42\nv_add_u32 v43, s58, v42")
        a("ds_write_b32 v43, v40\ns_waitcnt lgkmcnt(0)\ns_barrier")
        a("ds_read_b32 v44, v42\nds_read_b32 v45, v42 offset:64\nds_read_b32 v46, v42 offset:128\nds_read_b32 v47, v42 offset:192")
        for u in range(8): a(f"v_xor_b32 v{48+u}, {u<<5}, v23")
        a("s_waitcnt lgkmcnt(0)\nv_max3_f32 v40, v44, v45, v46\nv_max_f32 v40, v40, v47")
        for i in range(8): a(f"v_sub_f32 v{32+i}, v{32+i}, v40")
        for i in range(8): a(f"v_exp_f32 v{32+i}, v{32+i}")
        a("v_add_f32 v41, v32, v33\nv_add_f32 v44, v34, v35\nv_add_f32 v45, v36, v37\nv_add_f32 v46, v38, v39")
        a("v_cvt_pk_bf16_f32 v56, v32, v33\nv_cvt_pk_bf16_f32 v57, v34, v35\nv_cvt_pk_bf16_f32 v58, v36, v37\nv_cvt_pk_bf16_f32 v59, v38, v39")
        a(f"s_lshl_b32 s58, s3, 10\nv_add_u32 v10, {PP}, v4\nv_add_u32 v11, s58, v10\nds_write_b128 v11, v[56:59]")
        a("v_add_f32 v41, v41, v44\nv_add_f32 v45, v45, v46\nv_add_f32 v41, v41, v45")
        self.allreduce([41], "v_add_f32", [44], rows=False)
        a(f"ds_write_b32 v43, v41 offset:{PL-PM}")
        def vreads(kk, dst):
            for u in range(8):
                for hf in range(2):
                    r = dst + 4 * u + 2 * hf
                    a(f"ds_read_b64_tr_b16 v[{r}:{r+1}], v{48+u} offset:{(kk&1)*32768+hf*16384}")
        a("s_waitcnt lgkmcnt(0)\ns_barrier")
        for kk in range(4): a(f"ds_read_b128 v[{64+4*kk}:{67+4*kk}], v10 offset:{1024*kk}")
        a(f"v_lshlrev_b32 v11, 4, v3\nv_add_u32 v11, {PM}, v11")
        for kk in range(4): a(f"ds_read_b128 v[{80+4*kk}:{83+4*kk}], v11 offset:{PL-PM+64*kk}")
        vreads(0, 128)
        for kk in range(4):
            if kk == 1:
                for u in range(8): a(f"v_add_u32 v{48+u}, 0x10000, v{48+u}")
            cur = 128 + 32 * (kk & 1)
            if kk < 3:
                nxt = 128 + 32 * ((kk + 1) & 1)
            for u in range(8):
                if kk < 3 and kk != 1:
                    for hf in range(2):
                        r = nxt + 4 * u + 2 * hf
                        a(f"ds_read_b64_tr_b16 v[{r}:{r+1}], v{48+u} offset:{32768+hf*16384}")
                elif kk == 1:
                    for hf in range(2):
                        r = nxt + 4 * u + 2 * hf
                        a(f"ds_read_b64_tr_b16 v[{r}:{r+1}], v{48+u} offset:{hf*16384}")
                out = 16 if kk < 3 else 14 - 2 * u
                a(f"s_waitcnt lgkmcnt({min(15, out)})") if (kk == 3 or True) else None
                c = "0" if kk == 0 else f"v[{96+4*u}:{99+4*u}]"
                a(f"v_mfma_f32_16x16x32_bf16 v[{96+4*u}:{99+4*u}], v[{64+4*kk}:{67+4*kk}], v[{cur+4*u}:{cur+3+4*u}], {c}")
        for r in range(4):
            a(f"v_add_f32 v{80+r}, v{80+r}, v{84+r}\nv_add_f32 v{88+r}, v{88+r}, v{92+r}")
        for r in range(4): a(f"v_add_f32 v{80+r}, v{80+r}, v{88+r}")
        for r in range(4): a(f"v_rcp_f32 v{84+r}, v{80+r}")
        a(f"v_and_b32 v10, 3, v2\nv_lshl_add_u32 v11, v3, 2, v10\nv_lshlrev_b32 v11, 2, v11\nv_add_u32 v11, {PM}, v11")
        a("ds_read_b32 v44, v11\nds_read_b32 v45, v11 offset:64\nds_read_b32 v46, v11 offset:128\nds_read_b32 v47, v11 offset:192")
        for u in range(8):
            for r in range(4): a(f"v_mul_f32 v{96+4*u+r}, v{96+4*u+r}, v{84+r}")
        for r in range(4):
            for j in range(4): a(f"v_cvt_pk_bf16_f32 v{128+4*r+j}, v{96+8*j+r}, v{100+8*j+r}")
        a(f"v_lshlrev_b32 v12, 4, v2\nv_lshl_add_u32 v12, v3, 12, v12")
        a(f"s_lshl_b32 s5, s56, 15\ns_lshl_b32 s58, s57, 14\ns_add_u32 s5, s5, s58\ns_lshl_b32 s58, s3, 8\ns_add_u32 s5, s5, s58\ns_add_u32 s5, s5, {H3O}")
        for r in range(4):
            a(f"buffer_store_dwordx4 v[{128+4*r}:{131+4*r}], v12, {WS}, s5 offen offset:{1024*r} sc1")
        for r in range(4):
            a(f"v_add3_u32 v{32+r}, v{128+4*r}, v{129+4*r}, v{130+4*r}\nv_add_u32 v{32+r}, v{32+r}, v{131+4*r}")
        self.allreduce([32, 33, 34, 35], "v_add_u32", [], x16=False, x32=False)
        a("v_cmp_eq_u32 vcc, 1, v10\nv_cmp_eq_u32 s[60:61], 2, v10\nv_cmp_eq_u32 s[62:63], 3, v10")
        a("v_cndmask_b32 v32, v32, v33, vcc\nv_cndmask_b32 v80, v80, v81, vcc")
        a("v_cndmask_b32 v32, v32, v34, s[60:61]\nv_cndmask_b32 v80, v80, v82, s[60:61]")
        a("v_cndmask_b32 v37, v32, v35, s[62:63]\nv_cndmask_b32 v80, v80, v83, s[62:63]")
        a("v_log_f32 v80, v80\ns_waitcnt lgkmcnt(0)\nv_max3_f32 v44, v44, v45, v46\nv_max_f32 v44, v44, v47\nv_add_f32 v36, v44, v80")
        a("v_add_u32 v37, s4, v37\nv_mov_b32 v38, s4\nv_mov_b32 v39, 0")
        a("v_lshl_add_u32 v11, v3, 2, v10\nv_lshlrev_b32 v11, 4, v11")
        a(f"s_lshl_b32 s5, s56, 11\ns_lshl_b32 s58, s57, 10\ns_add_u32 s5, s5, s58\ns_lshl_b32 s58, s3, 8\ns_add_u32 s5, s5, s58\ns_add_u32 s5, s5, {H3S}")
        a("v_cmp_gt_u32 vcc, 4, v2\ns_and_saveexec_b64 s[62:63], vcc")
        a(f"buffer_store_dwordx4 v[36:39], v11, {WS}, s5 offen sc1\ns_mov_b64 exec, s[62:63]")
        self.stamp(5)
        a("s_cmp_eq_u32 s57, 1\ns_cbranch_scc1 L_U")
        if self.uvpos == "post": tw("wuv")
        if self.wopos == "post": tw("wo")
        a("v_lshlrev_b32 v16, 4, v2\nv_lshl_add_u32 v16, v3, 15, v16")
        a(f"s_lshl_b32 s5, s3, 20\ns_lshl_b32 s58, s54, 10\ns_add_u32 s5, s5, s58\ns_lshl_b32 s58, s55, 8\ns_add_u32 s5, s5, s58\ns_add_u32 s5, s5, {H3O}")
        a("s_and_b32 s58, s3, 1\nv_lshrrev_b32 v10, 3, v2\nv_xor_b32 v10, s58, v10\nv_lshlrev_b32 v10, 5, v10\nv_and_b32 v11, 7, v2\nv_lshl_add_u32 v10, v11, 2, v10\nv_add_u32 v10, v10, v3\nv_lshlrev_b32 v17, 11, v10")
        a(f"s_lshr_b32 s6, s3, 1\ns_lshl_b32 s6, s6, 17\ns_lshr_b32 s58, s54, 4\ns_lshl_b32 s58, s58, 10\ns_add_u32 s6, s6, s58\ns_lshl_b32 s58, s55, 8\ns_add_u32 s6, s6, s58\ns_and_b32 s58, s54, 15\ns_lshl_b32 s58, s58, 4\ns_add_u32 s6, s6, s58\ns_add_u32 s6, s6, {H3S}")
        a("s_lshr_b32 s58, s3, 1\nv_bfe_u32 v10, v1, 3, 1\nv_cmp_eq_u32 vcc, s58, v10")
        for j in range(4): a(f"v_cndmask_b32 v{24+j}, 0, v{6+j}, vcc")
        if self.ack3: a("s_waitcnt vmcnt(0)")
        self.stamp(6)
        self.poll_head("h3")
        a(f"buffer_load_dwordx4 v[20:23], v17, {WS}, s6 offen sc1")
        for i in range(8):
            a(f"s_add_u32 s58, s5, {i<<17}\nbuffer_load_dwordx4 v[{64+4*i}:{67+4*i}], v16, {WS}, s58 offen sc1")
        a("s_waitcnt vmcnt(8)")
        a("v_xor_b32 v28, s4, v22\nv_mov_b32 v29, v20")
        self.allreduce([29], "v_max_f32", [30])
        a("v_sub_f32 v29, v20, v29\nv_exp_f32 v29, v29\nv_subrev_u32 v21, s4, v21\nv_mov_b32 v30, v29")
        self.allreduce([30], "v_add_f32", [31])
        a("v_rcp_f32 v30, v30\ns_nop 0\nv_mul_f32 v29, v29, v30\nv_cvt_pk_bf16_f32 v29, v29, v29")
        for i in range(8):
            for j in range(4):
                a(f"v_and_b32_dpp v{128+4*i+j}, v29, v{24+j} row_newbcast:{i} row_mask:0xf bank_mask:0xf")
        a("s_waitcnt vmcnt(0)")
        for i in range(8):
            a(f"v_add3_u32 v{32+i}, v{64+4*i}, v{65+4*i}, v{66+4*i}")
        for i in range(8):
            a(f"v_add_u32 v{32+i}, v{32+i}, v{67+4*i}")
        self.allreduce(list(range(32, 40)), "v_add_u32", [], x16=False, x32=False)
        for i in range(8):
            a(f"v_xor_b32_dpp v{32+i}, v21, v{32+i} row_newbcast:{i} row_mask:0xf bank_mask:0xf")
        a("v_or3_b32 v28, v28, v32, v33\nv_or3_b32 v34, v34, v35, v36\nv_or3_b32 v37, v37, v38, v39\nv_or3_b32 v28, v28, v34, v37")
        self.poll_tail("h3", 28)
        for i in range(8):
            c = "0" if i == 0 else "v[12:15]"
            a(f"v_mfma_f32_16x16x32_bf16 v[12:15], v[{128+4*i}:{131+4*i}], v[{64+4*i}:{67+4*i}], {c}")
        a(f"v_and_b32 v10, 1, v3\nv_lshlrev_b32 v10, 4, v10\nv_lshl_add_u32 v10, v2, 5, v10\ns_lshl_b32 s58, s3, 9\ns_add_u32 s58, s58, {CL}\nv_add_u32 v10, s58, v10")
        a("s_lshr_b32 s58, s3, 1\nv_lshrrev_b32 v11, 1, v3\nv_cmp_eq_u32 vcc, s58, v11\ns_and_saveexec_b64 s[62:63], vcc")
        a("s_nop 4\nds_write_b128 v10, v[12:15]\ns_mov_b64 exec, s[62:63]")
        a(f"v_bfe_u32 v10, v1, 3, 1\nv_lshlrev_b32 v10, 10, v10\nv_lshl_add_u32 v10, v3, 5, v10\ns_lshl_b32 s58, s3, 7\ns_add_u32 s58, s58, {CL}\nv_add_u32 v10, s58, v10")
        a("s_waitcnt lgkmcnt(0)\ns_barrier")
        self.stamp(7)
        a("ds_read_b128 v[32:35], v10\nds_read_b128 v[36:39], v10 offset:16\nds_read_b128 v[40:43], v10 offset:512\nds_read_b128 v[44:47], v10 offset:528")
        a("s_waitcnt lgkmcnt(0)")
        for i in range(8): a(f"v_add_f32 v{32+i}, v{32+i}, v{40+i}")
        for i in range(8): a(f"v_cvt_pk_bf16_f32 v{32+i}, v{32+i}, v{32+i}")
        for i in range(8):
            for j in range(4): a(f"v_and_b32 v{128+4*i+j}, v{32+i}, v{6+j}")
        for i in range(8):
            c = "0" if i == 0 else "v[12:15]"
            a(f"v_mfma_f32_16x16x32_bf16 v[12:15], v[{128+4*i}:{131+4*i}], v[{192+4*i}:{195+4*i}], {c}")
        a(f"s_lshl_b32 s5, s54, 4\ns_lshl_b32 s58, s55, 2\ns_add_u32 s5, s5, s58\ns_add_u32 s5, s5, s3\ns_lshl_b32 s5, s5, 10\ns_add_u32 s5, s5, {H4O}")
        self.granule_std()
        a(f"buffer_store_dwordx4 v[12:15], v4, {WS}, s5 offen sc1")
        a(f"s_lshl_b32 s5, s54, 14\ns_add_u32 s5, s5, {H4O}")
        self.stage2("h4", ffn=False)
        a(f"s_lshl_b32 s5, s55, 5\ns_add_u32 s5, s5, s54\ns_lshl_b32 s5, s5, 10\ns_add_u32 s5, s5, {H5O}")
        self.reduce4_publish()
        self.stamp(9)
        a("s_branch L_fin")
        a("L_U:")
        a("s_and_b32 s55, s56, 15\ns_cmp_ge_u32 s55, 14\ns_cbranch_scc1 L_R")
        a("s_cmp_ge_u32 s55, 6\ns_cbranch_scc1 L_fin\ns_mul_i32 s54, s52, 6\ns_add_u32 s54, s54, s55\ns_cmp_ge_u32 s54, 44\ns_cbranch_scc1 L_fin")
        a("s_and_b32 s55, s54, 3\ns_lshr_b32 s54, s54, 2")
        a("s_lshl_b32 s6, s55, 1\ns_lshr_b32 s58, s3, 1\ns_add_u32 s6, s6, s58")
        a("s_lshl_b32 s58, s6, 7")
        self.ln_ops("s58")
        a(f"s_mov_b32 s58, {16*2752}\nv_mul_lo_u32 v11, v3, s58\nv_lshl_add_u32 v11, v2, 4, v11")
        a(f"s_mul_i32 s5, s6, {64*2752}\ns_lshl_b32 s58, s54, 8\ns_add_u32 s5, s5, s58")
        a("s_bitcmp1_b32 s3, 0\ns_cbranch_scc1 L_w3")
        for m, nxt in (("w1", "s_branch L_w13d\nL_w3:"), ("w3", "L_w13d:")):
            for i in range(16):
                a(f"buffer_load_dwordx4 v[{64+4*i}:{67+4*i}], v11, {srd(m)}, s5 offen{pw}\ns_add_u32 s5, s5, 2752")
            a(nxt)
        a("s_lshl_b32 s5, s54, 17\ns_lshl_b32 s58, s3, 15\ns_add_u32 s5, s5, s58\ns_lshl_b32 s58, s55, 8\ns_add_u32 s5, s5, s58")
        for i in range(8):
            a(f"buffer_load_dwordx4 v[{224+4*i}:{227+4*i}], v5, {srd('w2')}, s5 offen offset:{1024*(i&3)}{pw}")
            if i == 3: a("s_add_u32 s5, s5, 4096")
        a("s_waitcnt vmcnt(24)")
        self.ln_compute()
        self.gemv16(8)
        a(f"s_lshl_b32 s5, s54, 1\ns_and_b32 s58, s3, 1\ns_add_u32 s5, s5, s58\ns_lshl_b32 s5, s5, 3\ns_add_u32 s5, s5, s6\ns_lshl_b32 s5, s5, 10\ns_add_u32 s5, s5, {HGO}")
        self.granule_std()
        a(f"buffer_store_dwordx4 v[12:15], v4, {WS}, s5 offen sc1")
        self.stamp(6)
        a(f"s_lshl_b32 s5, s54, 14\ns_add_u32 s5, s5, {HGO}")
        self.stage2("hg", ffn=True)
        a(f"s_mul_i32 s5, s55, 12\ns_add_u32 s5, s5, s54\ns_lshl_b32 s5, s5, 10\ns_add_u32 s5, s5, {HFO}")
        self.reduce4_publish("u")
        self.stamp(9)
        a("s_branch L_fin")
        a("L_R:")
        a("s_cmp_lg_u32 s3, 0\ns_cbranch_scc1 L_fin")
        a("s_sub_u32 s55, s55, 14\ns_lshl_b32 s54, s52, 1\ns_add_u32 s54, s54, s55\ns_and_b32 s55, s54, 3\ns_lshr_b32 s54, s54, 2")
        a("s_lshr_b32 s5, s55, 1\ns_lshl_b32 s5, s5, 10\ns_lshl_b32 s58, s54, 8\ns_add_u32 s5, s5, s58\ns_and_b32 s58, s55, 1\ns_lshl_b32 s58, s58, 3\ns_add_u32 s62, s5, s58")
        a(f"v_lshlrev_b32 v18, 4, v2\nbuffer_load_dwordx2 v[20:21], v18, {srd('x')}, s62 offen")
        a("v_cmp_gt_u32 vcc, 4, v2\nv_mov_b32 v10, 0x3f803f80")
        for j in range(4): a(f"v_and_b32 v{24+j}, v10, v{6+j}\nv_cndmask_b32 v{24+j}, 0, v{24+j}, vcc")
        a("v_lshl_add_u32 v16, v3, 10, v18")
        a(f"s_mul_i32 s5, s54, {12*1024}\ns_lshl_b32 s58, s55, 8\ns_add_u32 s5, s5, s58\ns_add_u32 s5, s5, {HFO}")
        a(f"s_lshl_b32 s6, s54, 15\ns_add_u32 s6, s6, s58\ns_add_u32 s6, s6, {H5O}")
        n = self.rdelay
        while n > 0:
            a(f"s_sleep {min(n,127)}"); n -= 127
        self.poll_head("hf")
        for i in range(3):
            a(f"s_add_u32 s58, s5, {4096*i}\nbuffer_load_dwordx4 v[{64+4*i}:{67+4*i}], v16, {WS}, s58 offen sc1")
        a("s_waitcnt vmcnt(0)")
        a("v_cmp_eq_u32 vcc, 3, v3\nv_mov_b32 v10, s4\nv_mov_b32 v11, 0")
        a("v_cndmask_b32 v72, v72, v11, vcc\nv_cndmask_b32 v73, v73, v11, vcc\nv_cndmask_b32 v74, v74, v10, vcc\nv_cndmask_b32 v75, v75, v11, vcc")
        a("v_xor_b32 v12, s4, v66\nv_xor_b32 v13, s4, v70\nv_xor_b32 v14, s4, v74\nv_or3_b32 v12, v12, v13, v14")
        a("s_sleep 8")
        self.poll_tail("hf", 12)
        for i in range(3):
            c = "0" if i == 0 else "v[32:35]"
            a(f"v_mfma_f32_16x16x32_bf16 v[32:35], v[24:27], v[{64+4*i}:{67+4*i}], {c}")
        for r in range(4): self.rbf(32 + r)
        self.silu(32, 4, 36)
        for r in range(4): self.rbf(32 + r)
        a("v_lshlrev_b32 v40, 16, v20\nv_and_b32 v41, 0xffff0000, v20\nv_lshlrev_b32 v42, 16, v21\nv_and_b32 v43, 0xffff0000, v21")
        self.stamp(8)
        self.poll_head("h5")
        for i in range(8):
            a(f"s_add_u32 s58, s6, {4096*i}\nbuffer_load_dwordx4 v[{64+4*i}:{67+4*i}], v16, {WS}, s58 offen sc1")
        a("s_waitcnt vmcnt(0)")
        a("v_xor_b32 v12, s4, v66\nv_xor_b32 v13, s4, v70")
        for i in range(2, 8, 2):
            a(f"v_xor_b32 v14, s4, v{66+4*i}\nv_xor_b32 v15, s4, v{70+4*i}\nv_or3_b32 v12, v12, v14, v15")
        a("v_or_b32 v12, v12, v13")
        self.poll_tail("h5", 12)
        for i in range(8):
            c = "0" if i == 0 else "v[44:47]"
            a(f"v_mfma_f32_16x16x32_bf16 v[44:47], v[24:27], v[{64+4*i}:{67+4*i}], {c}")
        for r in range(4): self.rbf(44 + r)
        for r in range(4): a(f"v_mul_f32 v{44+r}, v{44+r}, v{32+r}")
        for r in range(4): self.rbf(44 + r)
        for r in range(4): a(f"v_add_f32 v{44+r}, v{44+r}, v{40+r}")
        a("v_cvt_pk_bf16_f32 v44, v44, v45\nv_cvt_pk_bf16_f32 v45, v46, v47")
        a("v_cmp_gt_u32 vcc, 16, v1\ns_and_saveexec_b64 s[60:61], vcc")
        a(f"buffer_store_dwordx2 v[44:45], v18, {srd('out')}, s62 offen\ns_mov_b64 exec, s[60:61]")
        a("s_or_b32 s58, s54, s55\ns_cmp_lg_u32 s58, 0\ns_cbranch_scc1 L_noep")
        a(f"v_mov_b32 v10, 0\nv_mov_b32 v11, s7\nv_cmp_eq_u32 vcc, 0, v1\ns_and_saveexec_b64 s[60:61], vcc\nbuffer_store_dword v11, v10, {WS}, 0 offen sc1\ns_mov_b64 exec, s[60:61]")
        a("L_noep:")
        self.stamp(10)
        a("L_fin:")
        if self.amp:
            k, mult, wg = self.amp
            a(f"s_cmp_lg_u32 s2, {wg}\ns_cbranch_scc1 L_noamp\ns_cmp_lg_u32 s3, 0\ns_cbranch_scc1 L_noamp")
            a(f"s_sub_u32 s58, s{88+k}, s88\ns_mul_i32 s58, s58, {mult}\ns_add_u32 s58, s58, 4000")
            a("L_amp:\ns_memrealtime s[60:61]\ns_waitcnt lgkmcnt(0)\ns_sub_u32 s59, s60, s88\ns_cmp_lt_u32 s59, s58\ns_cbranch_scc1 L_amp\nL_noamp:")
        if self.stamps:
            a(f"s_lshl_b32 s5, s2, 2\ns_add_u32 s5, s5, s3\ns_lshl_b32 s5, s5, 6\ns_add_u32 s5, s5, {STAMP_OFF}")
            a("v_mov_b32 v10, 0\nv_cmp_eq_u32 vcc, 0, v1\ns_and_saveexec_b64 s[62:63], vcc")
            for k in range(14):
                a(f"v_mov_b32 v{16+k}, s{88+k}")
            for k in range(14):
                a(f"buffer_store_dword v{16+k}, v10, {WS}, s5 offen offset:{4*k}")
        a("L_end:")
        return self.wrap()
    def silu(self, v, n, t):
        a = self.a
        for r in range(n): a(f"v_mul_f32 v{t+r}, {hex(f2u(-1.4426950408889634))}, v{v+r}")
        for r in range(n): a(f"v_exp_f32 v{t+r}, v{t+r}")
        for r in range(n): a(f"v_add_f32 v{t+r}, 1.0, v{t+r}")
        for r in range(n): a(f"v_rcp_f32 v{t+r}, v{t+r}")
        for r in range(n): a(f"v_mul_f32 v{v+r}, v{v+r}, v{t+r}")
    def stage2(self, name, ffn):
        a = self.a
        WS = srd("ws")
        a("v_and_b32 v10, 3, v1\nv_lshlrev_b32 v10, 10, v10\nv_bfe_u32 v11, v1, 2, 2\nv_lshl_add_u32 v10, v11, 8, v10\nv_lshl_add_u32 v10, v3, 4, v10\ns_lshl_b32 s58, s3, 6\ns_add_u32 s5, s5, s58")
        if self.ack4: a("s_waitcnt vmcnt(0)")
        self.poll_head(name)
        for k in range(4):
            a(f"s_add_u32 s58, s5, {4096*k}\nbuffer_load_dwordx4 v[{64+4*k}:{67+4*k}], v10, {WS}, s58 offen sc1")
        a("s_waitcnt vmcnt(0)")
        a("v_xor_b32 v11, s4, v66\nv_xor_b32 v12, s4, v70\nv_xor_b32 v13, s4, v74\nv_xor_b32 v14, s4, v78\nv_or3_b32 v11, v11, v12, v13\nv_or_b32 v11, v11, v14")
        self.poll_tail(name, 11)
        if not ffn: self.stamp(8)
        for k in range(4):
            a(f"v_lshlrev_b32 v{32+4*k}, 16, v{64+4*k}\nv_and_b32 v{33+4*k}, 0xffff0000, v{64+4*k}\nv_lshlrev_b32 v{34+4*k}, 16, v{65+4*k}\nv_and_b32 v{35+4*k}, 0xffff0000, v{65+4*k}")
        for r in range(4): a(f"v_add_f32 v{32+r}, v{32+r}, v{36+r}\nv_add_f32 v{40+r}, v{40+r}, v{44+r}")
        if not ffn:
            for r in range(4): a(f"v_add_f32 v{32+r}, v{32+r}, v{40+r}")
            vs = [32, 33, 34, 35]
        else:
            vs = [32, 33, 34, 35, 40, 41, 42, 43]
        for q in ("[1,0,3,2]", "[2,3,0,1]"):
            for v in vs: a(f"v_add_f32_dpp v{v}, v{v}, v{v} quad_perm:{q} row_mask:0xf bank_mask:0xf")
        if ffn:
            for v in vs: self.rbf(v)
            self.silu(32, 4, 36)
            for r in range(4): self.rbf(32 + r)
            for r in range(4): a(f"v_mul_f32 v{32+r}, v{32+r}, v{40+r}")
            a("s_cmp_eq_u32 s54, 10\ns_cselect_b32 s58, s3, 0\ns_cmp_eq_u32 s58, 3\ns_cselect_b32 s58, 0, -1")
        a("v_cvt_pk_bf16_f32 v32, v32, v33\nv_cvt_pk_bf16_f32 v33, v34, v35")
        if ffn: a("v_and_b32 v32, s58, v32\nv_and_b32 v33, s58, v33")
        a("v_mov_b32_dpp v34, v32 row_half_mirror row_mask:0xf bank_mask:0xf\nv_mov_b32_dpp v35, v33 row_half_mirror row_mask:0xf bank_mask:0xf")
        a("v_and_b32 v11, 4, v1\nv_cmp_ne_u32 vcc, 0, v11")
        a("v_cndmask_b32 v36, v32, v34, vcc\nv_cndmask_b32 v37, v33, v35, vcc\nv_cndmask_b32 v38, v34, v32, vcc\nv_cndmask_b32 v39, v35, v33, vcc")
        a("s_mov_b32 s60, 0x01000100\ns_mov_b32 s61, 0x03020302")
        for i in range(8):
            a(f"v_perm_b32 v{40+i}, v{36+(i>>1)}, v{36+(i>>1)}, s{60+(i&1)}")
        for i in range(8):
            for j in range(4): a(f"v_and_b32 v{128+4*i+j}, v{40+i}, v{6+j}")
        for i in range(8):
            c = "0" if i == 0 else "v[12:15]"
            a(f"v_mfma_f32_16x16x32_bf16 v[12:15], v[{128+4*i}:{131+4*i}], v[{224+4*i}:{227+4*i}], {c}")
    def reduce4_publish(self, sfx=""):
        a = self.a
        a(f"s_lshl_b32 s58, s3, 10\nv_add_u32 v10, {FR}, v4\nv_add_u32 v11, s58, v10")
        a("ds_write_b128 v11, v[12:15]\ns_waitcnt lgkmcnt(0)\ns_barrier")
        a(f"s_cmp_lg_u32 s3, 0\ns_cbranch_scc1 L_fin")
        a("ds_read_b128 v[16:19], v10 offset:1024\nds_read_b128 v[20:23], v10 offset:2048\nds_read_b128 v[24:27], v10 offset:3072\ns_waitcnt lgkmcnt(0)")
        for r in range(4): a(f"v_add_f32 v{12+r}, v{12+r}, v{16+r}\nv_add_f32 v{20+r}, v{20+r}, v{24+r}")
        for r in range(4): a(f"v_add_f32 v{12+r}, v{12+r}, v{20+r}")
        self.granule_std()
        a(f"buffer_store_dwordx4 v[12:15], v4, {srd('ws')}, s5 offen sc1")
    def wrap(self):
        hdr = open("cdna_kernels/" + NAME + ".s.ref").read().split("; Override")[0]
        return (hdr + f"; @launch grid=(256,1,1) block=(256,1,1) lds={LDS_BYTES}\n"
            f'.amdgcn_target "amdgcn-amd-amdhsa--gfx950"\n.text\n.globl {NAME}_kernel\n.p2align 8\n.type {NAME}_kernel,@function\n{NAME}_kernel:\n'
            + self.a.text() + f"""s_endpgm
.section .rodata,"a"
.p2align 6
.amdhsa_kernel {NAME}_kernel
  .amdhsa_next_free_vgpr 256
  .amdhsa_next_free_sgpr 102
  .amdhsa_accum_offset 256
  .amdhsa_group_segment_fixed_size 0
  .amdhsa_kernarg_size 104
  .amdhsa_user_sgpr_count 2
  .amdhsa_user_sgpr_kernarg_segment_ptr 1
  .amdhsa_system_sgpr_workgroup_id_x 1
  .amdhsa_float_denorm_mode_32 3
.end_amdhsa_kernel
""")
if __name__ == "__main__":
    import json
    out = sys.argv[1]
    kw = json.loads(sys.argv[2]) if len(sys.argv) > 2 else {}
    g = G(**kw)
    open(out, "w").write(g.gen())
    print(out, "instructions:", g.a.ninst)
```
